```python
import torch

def _softmax(x, axis=-1):
    return torch.softmax(x, dim=axis)
def _gelu(x):
    return torch.nn.functional.gelu(x, approximate="tanh")
def _silu(x):
    return torch.nn.functional.silu(x)
def _sigmoid(x):
    return torch.sigmoid(x)
def _layernorm(x, axis=-1, eps=1e-5):
    m = x.mean(dim=axis, keepdim=True)
    v = x.var(dim=axis, keepdim=True, unbiased=False)
    return (x - m) / torch.sqrt(v + eps)
def _scatter_add(tgt, idx, src, axis=0):
    return tgt.clone().index_add_(axis, idx, src)
def _segment_sum(src, seg, n):
    out = torch.zeros((n,) + src.shape[1:], dtype=src.dtype)
    return out.index_add_(0, seg, src)
def _pad(x, pw):
    flat = tuple(v for pair in reversed(pw) for v in pair)
    return torch.nn.functional.pad(x, flat)

kernel_name = 'standalone__deep_cross_xdeepfm__recsys'

def setup_inputs():

    _w = (lambda a: (lambda t: t.to(torch.bfloat16) if t.is_floating_point() else t)(torch.as_tensor(a)))
    B, F, D, L = 4096, 26, 16, 6
    V = min(1000, 100000)
    Din = F * D
    return {
        "idx": _w((lambda lo, hi, *s: torch.randint(lo, hi, s))(0, V, B, F).to(torch.int64)),
        "table": _w((lambda *s: torch.randn(*s, dtype=torch.bfloat16) * 0.8)(V, D)),
        "ws_cin": _w((lambda *s: torch.randn(*s, dtype=torch.bfloat16) * 0.4)(L, F, F, F) * (1.0 / F)),
        "w_cin_out": _w((lambda *s: torch.randn(*s, dtype=torch.bfloat16) * 0.4)(L * F) * ((L * F) ** -0.5)),
        "w_dnn1": _w((lambda *s: torch.randn(*s, dtype=torch.bfloat16) * 0.8)(Din, Din) * (Din ** -0.5)),
        "b_dnn1": _w((lambda *s: torch.randn(*s, dtype=torch.bfloat16) * 3.2)(Din) * 0.1),
        "w_dnn2": _w((lambda *s: torch.randn(*s, dtype=torch.bfloat16) * 0.4)(Din) * (Din ** -0.5)),
        "b_out": _w((lambda *s: torch.randn(*s, dtype=torch.bfloat16) * 0.4)(1)),
    }

def reference(idx, table, ws_cin, w_cin_out, w_dnn1, b_dnn1, w_dnn2, b_out):
    x0 = table[idx]
    B = x0.shape[0]
    L = ws_cin.shape[0]
    xk = x0
    pooled = []
    for l in range(L):
        xk = torch.einsum('bid,bjd,hij->bhd', xk, x0, ws_cin[l])
        pooled.append(xk.sum(axis=-1))
    p_plus = torch.stack(pooled, axis=1).reshape(B, -1)
    logit_cin = p_plus @ w_cin_out
    h = x0.reshape(B, -1)
    h = _gelu(h @ w_dnn1 + b_dnn1)
    logit_dnn = h @ w_dnn2
    return logit_cin + logit_dnn + b_out
```

```python
class Asm:
    def __init__(self):
        self.lines = []
        self.vm = 0
        self.ds = 0
        self.vm_done = 0
        self.ds_done = 0
    def e(self, s):
        self.lines.append("    " + s)
    def label(self, s):
        self.lines.append(s + ":")
    def c(self, s):
        self.lines.append("    ; " + s)
    def vmem(self, s):
        self.e(s); self.vm += 1; return self.vm
    def dsop(self, s):
        self.e(s); self.ds += 1; return self.ds
    def wait_vm(self, tok):
        if tok <= self.vm_done: return
        n = self.vm - tok
        assert n >= 0
        if n > 63: n = 63
        self.e(f"s_waitcnt vmcnt({n})")
        self.vm_done = max(self.vm_done, self.vm - n)
    def wait_ds(self, tok):
        if tok <= self.ds_done: return
        n = self.ds - tok
        assert n >= 0
        if n > 15: n = 15
        self.e(f"s_waitcnt lgkmcnt({n})")
        self.ds_done = max(self.ds_done, self.ds - n)
    def wait_all_ds(self):
        self.e("s_waitcnt lgkmcnt(0)"); self.ds_done = self.ds
    def wait_all_vm(self):
        self.e("s_waitcnt vmcnt(0)"); self.vm_done = self.vm
    def fork(self):
        a = Asm(); a.vm, a.ds, a.vm_done, a.ds_done = self.vm, self.ds, self.vm_done, self.ds_done
        return a
    def text(self):
        return "\n".join(self.lines) + "\n"
def vr(a, n):
    return f"v[{a}:{a+n-1}]" if n > 1 else f"v{a}"
def sr(a, n):
    return f"s[{a}:{a+n-1}]" if n > 1 else f"s{a}"
```

```python
import sys
from asmlib import *

DEBUG = None
for a_ in sys.argv[1:]:
    if a_.startswith("--dbg="): DEBUG = a_[6:]
OUT = [a_ for a_ in sys.argv[1:] if not a_.startswith("--")]
OUT = OUT[0] if OUT else "k.s"

KN = "standalone__deep_cross_xdeepfm__recsys_kernel"
T_BASE = 0
IDXL = 32768
XREG = 0
QS = 0; QS_ROW = 56
RING = 40960; RING_SLOTS = 5; RING_W = RING_SLOTS * 1024
QROW = 816
QW0 = RING + 4 * RING_W
YREG = RING
WROW = 1424
RA = QW0 + 26 * QROW
RB = RA + 27 * WROW
MISC = RB + 27 * WROW
UT = MISC; UT_ROW = 80
BW = UT + 32 * UT_ROW
PART = BW
CINP = BW + 1024
FIN = CINP + 128
CNT = FIN + 256
LDS_END = CNT + 16
assert LDS_END <= 163840, LDS_END
QW1 = RA
S_WG, S_WAVE = 2, 3
SRD_IDX, SRD_TAB, SRD_W = 4, 8, 12
P_IDX, P_TAB, P_W, P_WO, P_W1, P_B1, P_W2, P_BO, P_OUT, P_DBG, P_WS, P_PC = 16, 18, 20, 22, 24, 26, 28, 30, 32, 34, 36, 38
SRD_W1, SRD_WO = 48, 52
S_DT, S_HW, S_GRP, S_Q = 46, 47, 56, 57
S_RING = 58
ITEMS = [(q, p) for q in range(13) for p in range(q, 13)]
USCALE_BITS = 0x04000400
V_TID, V_LANE = 0, 1
V_AS, V_AM, V_AT = 2, 3, 4
V_PL = [5, 6]; V_CHK = 7
V_T0 = 8
D = [16, 32]; E = [48, 64]
ABUF = 80
Z = [96, 100]
TK = [104, 112]
XA = [120, 128]
P = [136, 150]
V_IDX = 164
V_W0 = 16
V_ITEM = 200; V_SR, V_SC, V_SD, V_SELL, V_SELH = 201, 202, 203, 204, 205
V_CNT, V_ONE = 206, 207
V_ST = 208
V_PF = 255

def cvt2(a, dst, src, t0, t1):
    a.e(f"v_lshlrev_b32 v{t0}, 16, v{src}")
    a.e(f"v_and_b32 v{t1}, 0xffff0000, v{src}")
    a.e(f"v_cvt_pk_f16_f32 v{dst}, v{t0}, v{t1}")

def pkmul(a, dst, xa, hi, p):
    h_ = 1 if hi else 0
    a.e(f"v_pk_mul_f16 v{dst}, v{xa}, v{p} op_sel:[{h_},0] op_sel_hi:[{h_},1]")

def sym_addr_setup(a, astride, src_base, hstride_src, dst_base):
    t0, t1, t2, t3 = V_ST, V_ST + 1, V_ST + 2, V_ST + 3
    a.e(f"v_and_b32 v{t0}, 0xff, v{V_ITEM}")
    a.e(f"v_bfe_u32 v{t1}, v{V_ITEM}, 8, 8")
    a.e(f"v_bfe_u32 v{t2}, v{V_ITEM}, 16, 8")
    a.e(f"v_bfe_u32 v{t3}, v{V_TID}, 7, 1")
    a.e(f"v_mul_u32_u24 v{V_SR}, {2*astride}, v{t0}")
    a.e(f"v_lshl_add_u32 v{V_SR}, v{t1}, 2, v{V_SR}")
    a.e(f"v_mul_u32_u24 v{V_SC}, {2*astride}, v{t1}")
    a.e(f"v_lshl_add_u32 v{V_SC}, v{t0}, 2, v{V_SC}")
    a.e(f"v_mul_u32_u24 v{t0}, {hstride_src}, v{t3}")
    a.e(f"v_add_u32 v{t0}, {src_base}, v{t0}")
    a.e(f"v_add_u32 v{V_SR}, v{V_SR}, v{t0}")
    a.e(f"v_add_u32 v{V_SC}, v{V_SC}, v{t0}")
    a.e(f"v_mul_u32_u24 v{t0}, {QROW}, v{t3}")
    a.e(f"v_lshl_add_u32 v{V_SD}, v{t2}, 2, v{t0}")
    a.e(f"v_add_u32 v{V_SD}, {dst_base}, v{V_SD}")

def sel_setup(a):
    a.e(f"v_mov_b32 v{V_ST}, 0x0c0c0c0c")
    a.e(f"v_mov_b32 v{V_SELL}, 0x05040100")
    a.e(f"v_mov_b32 v{V_SELH}, 0x07060302")
    a.e(f"v_cmp_gt_u32 vcc, 0x1000000, v{V_ITEM}")
    a.e("s_nop 1")
    a.e(f"v_cndmask_b32 v{V_SELL}, v{V_ST}, v{V_SELL}, vcc")
    a.e(f"v_cndmask_b32 v{V_SELH}, v{V_ST}, v{V_SELH}, vcc")

def sym_run(a, astride, hstride_src, filler=None):
    toks = {}
    filler = list(filler or [])
    def issue(it):
        b = V_ST + 4 + 4 * (it % 4)
        o = it * 2 * hstride_src
        a.dsop(f"ds_read_b32 v{b}, v{V_SR} offset:{o}")
        a.dsop(f"ds_read_b32 v{b+1}, v{V_SR} offset:{o+astride}")
        a.dsop(f"ds_read_b32 v{b+2}, v{V_SC} offset:{o}")
        toks[it] = a.dsop(f"ds_read_b32 v{b+3}, v{V_SC} offset:{o+astride}")
    ahead = 2
    for it in range(ahead): issue(it)
    per = (len(filler) + 12) // 13
    for it in range(13):
        if it + ahead < 13: issue(it + ahead)
        for _ in range(per):
            if filler: a.e(filler.pop(0))
        b = V_ST + 4 + 4 * (it % 4)
        t0, t1 = V_ST + 20 + 2 * (it % 2), V_ST + 21 + 2 * (it % 2)
        a.wait_ds(toks[it])
        a.e(f"v_perm_b32 v{t0}, v{b+3}, v{b+2}, v{V_SELL}")
        a.e(f"v_perm_b32 v{t1}, v{b+3}, v{b+2}, v{V_SELH}")
        a.e(f"v_pk_add_f16 v{t0}, v{b}, v{t0}")
        a.e(f"v_pk_add_f16 v{t1}, v{b+1}, v{t1}")
        o = it * 2 * QROW
        a.dsop(f"ds_write_b32 v{V_SD}, v{t0} offset:{o}")
        a.dsop(f"ds_write_b32 v{V_SD}, v{t1} offset:{o+400}")
    assert not filler

def stage_S(a, acc, lin):
    nkb = 25 if lin else 23
    toks = {}
    def aread(kb):
        toks[kb] = a.dsop(f"ds_read_b128 {vr(ABUF + 4*(kb%4), 4)}, v{V_AS} offset:{16*kb}")
    def zgen(g, kb):
        if kb >= 23: return
        for t in range(4):
            n = 4 * kb + t
            if n < 91:
                q, p = ITEMS[n]
                pkmul(a, Z[g] + t, XA[g] + (q >> 1), q & 1, P[g] + p)
            else:
                a.e(f"v_mov_b32 v{Z[g]+t}, 0")
    for kb in range(3): aread(kb)
    zgen(0, 0); zgen(1, 0)
    for kb in range(nkb):
        a.wait_ds(toks[kb])
        ab = vr(ABUF + 4 * (kb % 4), 4)
        for g in range(2):
            b = vr(Z[g], 4) if kb < 23 else vr(XA[g] + 4 * (kb - 23), 4)
            c_ = "0" if kb == 0 else vr(acc[g], 16)
            a.e(f"v_mfma_f32_32x32x16_f16 {vr(acc[g],16)}, {ab}, {b}, {c_}")
            if g == 0 and kb + 3 < nkb: aread(kb + 3)
            zgen(g, kb + 1)

def stage_L(a, mid=None):
    nkb = 44
    toks = {}
    def aread(kb):
        if kb < 39:
            o = (kb // 13) * 416 + (kb % 13) * 16
            toks[kb] = a.dsop(f"ds_read_b128 {vr(ABUF + 4*(kb%4), 4)}, v{V_AM} offset:{o}")
        else:
            toks[kb] = a.dsop(f"ds_read_b128 {vr(ABUF + 4*(kb%4), 4)}, v{V_AT} offset:{16*(kb-39)}")
    def zgen(g, kb):
        if kb >= 43: return
        for t in range(4):
            u = 4 * kb + t
            if u > 168: break
            ii, p = u // 13, u % 13
            dst = Z[g] + t if kb < 42 else TK[g]
            pkmul(a, dst, TK[g] + 1 + (ii >> 1), ii & 1, P[g] + p)
    for kb in range(3): aread(kb)
    zgen(0, 0); zgen(1, 0)
    for kb in range(nkb):
        a.wait_ds(toks[kb])
        ab = vr(ABUF + 4 * (kb % 4), 4)
        for g in range(2):
            b = vr(Z[g], 4) if kb < 42 else vr(TK[g] + 4 * (kb - 42), 4)
            c_ = "0" if kb == 0 else vr(D[g], 16)
            a.e(f"v_mfma_f32_32x32x16_f16 {vr(D[g],16)}, {ab}, {b}, {c_}")
            if g == 0 and kb + 3 < nkb: aread(kb + 3)
            zgen(g, kb + 1)
        if kb == 21 and mid: mid(a)

def boundary(a, pooled, nops=10):
    a.e(f"s_nop {nops}")
    for g in range(2):
        for mm in range(6):
            a.e(f"v_cvt_pk_f16_f32 v{TK[g]+1+mm}, v{D[g]+2*mm}, v{D[g]+2*mm+1}")
        a.e(f"v_cvt_pk_f16_f32 v{TK[g]+7}, v{D[g]+12}, 0")
        if pooled: a.e(f"v_add_f32 v{V_PL[g]}, v{V_PL[g]}, v{D[g]+13}")
        a.e(f"v_max3_f32 v{V_T0}, abs(v{D[g]}), abs(v{D[g]+1}), abs(v{D[g]+2})")
        a.e(f"v_min_f32 v{V_CHK}, v{V_CHK}, v{V_T0}")

def c_sync(a, k):
    a.wait_all_ds()
    a.e("s_mov_b64 exec, 1")
    a.e(f"ds_add_u32 v{V_CNT}, v{V_ONE} offset:{4*k}")
    a.e("s_mov_b64 exec, -1")
    a.label(f"L_csync{k}")
    a.e(f"ds_read_b32 v{V_ST}, v{V_CNT} offset:{4*k}")
    a.e("s_waitcnt lgkmcnt(0)")
    a.e(f"v_readfirstlane_b32 s40, v{V_ST}")
    a.e("s_cmp_lt_u32 s40, 4")
    a.e(f"s_cbranch_scc1 L_csync{k}")

def dump_regs(a, regs):
    n = len(regs)
    a.e("s_nop 15")
    a.e(f"s_lshl_b32 s40, s{S_WG}, 3")
    a.e(f"s_add_u32 s40, s40, s{S_WAVE}")
    a.e(f"s_mul_i32 s40, s40, {n*256}")
    a.e(f"s_add_u32 s40, s40, 0x400000")
    a.e(f"v_and_b32 v254, 63, v{V_TID}")
    a.e(f"v_lshlrev_b32 v254, 2, v254")
    a.e(f"v_add_u32 v254, s40, v254")
    for i, r in enumerate(regs):
        a.e(f"global_store_dword v254, v{r}, {sr(P_WS,2)}")
        a.e(f"v_add_u32 v254, 256, v254")
    a.e("s_waitcnt vmcnt(0)")
    a.e("s_endpgm")

def stamp(a, slot):
    if DEBUG != "time": return
    a.e(f"s_memtime s[{60+2*slot}:{61+2*slot}]")
    a.e("s_waitcnt lgkmcnt(0)")
    a.ds_done = a.ds
def stamp_loop(a, base_slot):
    if DEBUG != "time": return
    a.e(f"s_memtime s[44:45]")
    a.e("s_waitcnt lgkmcnt(0)")
    a.ds_done = a.ds
    for k in range(3):
        a.e(f"s_cmp_eq_u32 s42, {k}")
        a.e(f"s_cselect_b32 s{60+2*(base_slot+k)}, s44, s{60+2*(base_slot+k)}")
def dump_stamps(a, n):
    if DEBUG != "time": return
    for k in range(n):
        a.e(f"s_sub_u32 s44, s{60+2*k}, s60")
        a.e(f"v_mov_b32 v{200+k}, s44")
    dump_regs(a, [200 + k for k in range(n)])

a = Asm()
a.e(f"s_cmp_ge_u32 s{S_WG}, 256")
a.e("s_cbranch_scc1 L_end")
if DEBUG == "time":
    a.e("s_memtime s[60:61]")
    for k in range(1, 20): a.e(f"s_mov_b32 s{60+2*k}, 0")
a.e(f"s_load_dwordx16 s[16:31], s[0:1], 0")
a.e(f"s_load_dwordx4 s[32:35], s[0:1], 64")
a.e(f"s_load_dwordx2 s[36:37], s[0:1], 80")
a.e(f"s_getpc_b64 {sr(P_PC,2)}")
a.label("L_pc")
a.c("code prefetch into L2 + item table")
a.e(f"v_lshlrev_b32 v1, 6, v0")
a.e(f"v_min_u32 v1, L_code_end-L_pc-4, v1")
a.vmem(f"global_load_dword v{V_PF}, v1, {sr(P_PC,2)}")
a.e(f"v_and_b32 v2, 127, v0")
a.e(f"v_lshlrev_b32 v2, 2, v2")
a.e(f"v_add_u32 v2, L_items-L_pc, v2")
tok_item = a.vmem(f"global_load_dword v{V_ITEM}, v2, {sr(P_PC,2)}")
a.e(f"v_lshrrev_b32 v3, 6, v0")
a.e(f"v_and_b32 v{V_LANE}, 63, v0")
a.e(f"v_readfirstlane_b32 s{S_WAVE}, v3")
a.e(f"v_lshlrev_b32 v3, 4, v{V_LANE}")
a.e(f"s_lshl_b32 s40, s{S_WAVE}, 12")
a.e(f"v_add_u32 v11, s40, v3")
a.e(f"s_mov_b32 m0, s40")
a.e(f"s_lshr_b32 s{S_GRP}, s{S_WG}, 2")
a.e(f"s_and_b32 s{S_Q}, s{S_WG}, 3")
a.e(f"s_cmp_ge_u32 s{S_WAVE}, 4")
a.e("s_cbranch_scc1 L_H")

def srd_setup(a):
    a.e("s_waitcnt lgkmcnt(0)")
    for srd, p, n in ((SRD_IDX, P_IDX, 4096*26*4), (SRD_TAB, P_TAB, 32000), (SRD_W, P_W, 210912), (SRD_W1, P_W1, 416*416*2), (SRD_WO, P_WO, 312)):
        a.e(f"s_mov_b32 s{srd}, s{p}")
        a.e(f"s_and_b32 s{srd+1}, s{p+1}, 0xffff")
        a.e(f"s_mov_b32 s{srd+2}, {n}")
        a.e(f"s_mov_b32 s{srd+3}, 0x00020000")
def table_dma(a):
    for k in range(4):
        t = a.vmem(f"buffer_load_dwordx4 v11, {sr(SRD_TAB,4)}, 0 offen offset:{1024*k} lds")
    return t

c = a.fork()
c.c("C-wave")
c.e(f"v_lshlrev_b32 v2, 4, v0")
srd_setup(c)
tok_tab = table_dma(c)
tok_w0 = []
for it in range(9):
    c.e(f"s_mov_b32 s41, {it*4096}")
    tok_w0.append(c.vmem(f"buffer_load_dwordx4 {vr(V_W0+4*it,4)}, v2, {sr(SRD_W,4)}, s41 offen"))
c.e(f"v_add_u32 v{V_ST+30}, {RA}, v2")
c.c("idx LDS address")
c.e(f"v_bfe_u32 v4, v{V_LANE}, 4, 1")
c.e(f"s_lshl_b32 s40, s{S_Q}, 4")
c.e(f"s_lshl_b32 s41, s{S_WAVE}, 2")
c.e(f"s_add_u32 s40, s40, s41")
c.e(f"v_add_u32 v4, s40, v4")
c.e(f"v_mul_u32_u24 v4, 104, v4")
c.e(f"v_bfe_u32 v5, v{V_LANE}, 2, 2")
c.e(f"v_lshl_add_u32 v4, v5, 2, v4")
c.e(f"v_add_u32 v{V_ST+31}, {IDXL}, v4")
c.c("A-operand addresses")
c.e(f"v_and_b32 v8, 31, v{V_LANE}")
c.e(f"v_lshrrev_b32 v9, 5, v{V_LANE}")
c.e(f"v_mov_b32 v10, 26")
c.e(f"v_cmp_gt_u32 vcc, 25, v8")
c.e(f"v_mov_b32 v{V_PL[0]}, 0")
c.e(f"v_mov_b32 v{V_PL[1]}, 0")
c.e(f"v_cndmask_b32 v11, v10, v8, vcc")
c.e(f"v_mov_b32 v10, 25")
c.e(f"v_cmp_eq_u32 vcc, 28, v8")
c.e(f"v_mov_b32 v{V_CHK}, 0x7f800000")
c.e(f"v_mov_b32 v{V_CNT}, {CNT}")
c.e(f"v_cndmask_b32 v11, v11, v10, vcc")
c.e(f"v_mul_u32_u24 v12, {WROW}, v11")
c.e(f"v_add_u32 v12, {RB}, v12")
c.e(f"v_mul_u32_u24 v13, 208, v9")
c.e(f"v_add_u32 v{V_AM}, v12, v13")
c.e(f"v_mul_u32_u24 v13, 80, v9")
c.e(f"v_add_u32 v{V_AT}, v12, v13")
c.e(f"v_add_u32 v{V_AT}, 1248, v{V_AT}")
c.e(f"v_min_u32 v11, 25, v11")
c.e(f"v_mul_u32_u24 v12, {QROW}, v11")
c.e(f"v_mul_u32_u24 v13, 400, v9")
c.e(f"v_add_u32 v{V_AS}, v12, v13")
c.e(f"v_add_u32 v{V_AS}, {QW0}, v{V_AS}")
c.e(f"v_mov_b32 v14, 0x05040100")
c.e(f"v_mov_b32 v10, 0x07060302")
c.e(f"v_cmp_eq_u32 vcc, 0, v9")
c.e(f"v_mov_b32 v{V_ONE}, 1")
c.e(f"v_and_b32 v15, 3, v{V_LANE}")
c.e(f"v_cndmask_b32 v14, v10, v14, vcc")
c.e(f"v_lshlrev_b32 v15, 3, v15")
c.wait_vm(tok_item)
sel_setup(c)
sym_addr_setup(c, 52, RA, 1352, QW0)
c.wait_vm(tok_tab)
stamp(c, 1)
c.e("s_barrier")
stamp(c, 2)
for g in range(2):
    for t in range(7):
        tk_i = c.dsop(f"ds_read_b32 v{V_IDX+7*g+t}, v{V_ST+31} offset:{208*g+16*t}")
c.c("W_0 -> f16, linear in RA")
for it in range(9):
    c.wait_vm(tok_w0[it])
    for k in range(4):
        r = V_W0 + 4 * it + k
        cvt2(c, r, r, V_ST + 1 + 2 * (k % 2), V_ST + 2 + 2 * (k % 2))
    c.dsop(f"ds_write_b128 v{V_ST+30}, {vr(V_W0+4*it,4)} offset:{it*4096}")
    if it == 0:
        c.wait_ds(tk_i)
        for k in range(14):
            c.e(f"v_lshl_add_u32 v{V_IDX+k}, v{V_IDX+k}, 5, v15")
        for g in range(2):
            for t in range(7):
                c.dsop(f"ds_read_b64_tr_b16 {vr(P[g]+2*t,2)}, v{V_IDX+7*g+t}")
c_sync(c, 0)
stamp(c, 3)
fill = []
class L_:
    def e(self, s): fill.append(s)
fl = L_()
for g in range(2):
    for p in range(13):
        cvt2(fl, P[g] + p, P[g] + p, 8 + 2 * (p % 2), 9 + 2 * (p % 2))
    fl.e(f"v_mov_b32 v{P[g]+13}, 0x3c003c00")
    for m in range(7):
        fl.e(f"v_perm_b32 v{XA[g]+m}, v{P[g]+2*m+1}, v{P[g]+2*m}, v14")
    fl.e(f"v_mov_b32 v{XA[g]+7}, 0")
sym_run(c, 52, 1352, filler=fill)
c_sync(c, 1)
stamp(c, 4)
stage_S(c, D, False)
if DEBUG == "s1":
    dump_regs(c, list(range(D[0], D[0] + 16)) + list(range(D[1], D[1] + 16)))
boundary(c, False)
c.e(f"v_add_u32 v{V_AS}, {(QW1 - QW0) & 0xffffffff}, v{V_AS}")
c.c("publish addressing (used by wave 0 in layer 3)")
c.e(f"v_lshlrev_b32 v{V_ST}, 2, v{V_LANE}")
c.e(f"v_add_u32 v{V_ST+1}, {PART}, v{V_ST}")
c.e(f"s_lshl_b32 s40, s{S_WG}, 8")
c.e(f"v_add_u32 v{V_ST}, s40, v{V_ST}")
c.e(f"s_lshl_b32 s40, s{S_GRP}, 2")
c.e(f"v_mov_b32 v{V_ST+2}, s40")
c.e(f"v_mov_b32 v{V_ST+3}, 0x01010101")
c.e(f"s_lshl_b32 s47, s{S_WAVE}, 4")
c.wait_all_ds()
stamp(c, 5)
c.e("s_barrier")
c.e("s_mov_b32 s42, 0")
c.e(f"s_mov_b32 s43, {(RA - RB) & 0xffffffff}")
c.label("L_layer")
c.e("s_add_u32 s46, s47, s42")
c.e("s_cmp_lg_u32 s46, 2")
c.e("s_cbranch_scc1 L_nopub")
c.e(f"ds_read2st64_b32 {vr(V_ST+4,2)}, v{V_ST+1} offset0:0 offset1:1")
c.e(f"ds_read2st64_b32 {vr(V_ST+6,2)}, v{V_ST+1} offset0:2 offset1:3")
c.e("s_waitcnt lgkmcnt(0)")
c.e(f"v_add_f32 v{V_ST+4}, v{V_ST+4}, v{V_ST+5}")
c.e(f"v_add_f32 v{V_ST+6}, v{V_ST+6}, v{V_ST+7}")
c.e(f"v_add_f32 v{V_ST+4}, v{V_ST+4}, v{V_ST+6}")
c.e(f"global_store_dword v{V_ST}, v{V_ST+4}, {sr(P_WS,2)} sc1")
c.label("L_nopub")
stamp_loop(c, 6)
def mid(a):
    a.e("s_barrier")
    a.e("s_cmp_lg_u32 s46, 2")
    a.e("s_cbranch_scc1 L_noatom")
    a.e("s_waitcnt vmcnt(0)")
    a.e("s_mov_b64 exec, 1")
    a.e(f"global_atomic_add v{V_ST+2}, v{V_ST+3}, {sr(P_DBG,2)} sc1")
    a.e("s_mov_b64 exec, -1")
    a.label("L_noatom")
stage_L(c, mid)
stamp_loop(c, 9)
if DEBUG in ("l2", "l3", "l4"):
    c.e(f"s_cmp_lg_u32 s42, {int(DEBUG[1]) - 2}")
    c.e("s_cbranch_scc1 L_nodump")
    dump_regs(c, list(range(D[0], D[0] + 16)) + list(range(D[1], D[1] + 16)))
    c.label("L_nodump")
c.e("s_cmp_eq_u32 s42, 2")
c.e("s_cbranch_scc1 L_layers_done")
boundary(c, True, nops=8)
c.e(f"v_add_u32 v{V_AM}, s43, v{V_AM}")
c.e(f"v_add_u32 v{V_AT}, s43, v{V_AT}")
c.e("s_sub_u32 s43, 0, s43")
c.e("s_add_u32 s42, s42, 1")
c.e("s_barrier")
c.e("s_branch L_layer")
c.label("L_layers_done")
c.e("s_barrier")
stamp(c, 12)
stage_S(c, E, True)
stamp(c, 13)
if DEBUG == "s2":
    dump_regs(c, list(range(E[0], E[0] + 16)) + list(range(E[1], E[1] + 16)))
c.c("final: 0.5*(pooled) + 2^-8 * u4.x4, reduce over d")
for g in range(2):
    c.e(f"v_add_f32 v{V_PL[g]}, v{V_PL[g]}, v{D[g]+13}")
    c.e(f"v_mul_f32 v{V_PL[g]}, 0x43000000, v{V_PL[g]}")
c.e(f"v_bfe_u32 v10, v{V_LANE}, 4, 1")
c.e(f"v_lshrrev_b32 v11, 5, v{V_LANE}")
c.e(f"v_lshl_add_u32 v10, v10, 1, v11")
c.e(f"s_lshl_b32 s40, s{S_WAVE}, 5")
c.e(f"s_add_u32 s40, s40, {CINP}")
c.e(f"v_lshl_add_u32 v10, v10, 2, s40")
c.e("s_nop 3")
for r in range(13):
    for g in range(2):
        c.e(f"v_fmac_f32 v{V_PL[g]}, v{E[g]+r}, v{D[g]+r}")
for sh in (1, 2, 4, 8):
    c.e("s_nop 0")
    for g in range(2):
        c.e(f"v_add_f32_dpp v{V_PL[g]}, v{V_PL[g]}, v{V_PL[g]} row_shr:{sh} row_mask:0xf bank_mask:0xf bound_ctrl:0")
for g in range(2):
    c.e(f"v_mul_f32 v{V_PL[g]}, 0x3b800000, v{V_PL[g]}")
c.e("s_mov_b32 exec_lo, 0x80008000")
c.e("s_mov_b32 exec_hi, 0x80008000")
c.e(f"ds_write_b32 v10, v{V_PL[0]}")
c.e(f"ds_write_b32 v10, v{V_PL[1]} offset:16")
c.e("s_mov_b64 exec, -1")
c.wait_all_ds()
c.e("s_barrier")
stamp(c, 14)
dump_stamps(c, 16)
c.e("s_endpgm")

h = a.fork()
h.label("L_H")
H_WL = 16
H_GM, H_GM8, H_LM, H_GT, H_LT, H_LT4, H_MSK = 2, 3, 4, 5, 6, 7, 8
H_PW, H_PWA = 9, 10
H_Z4 = 12
H_T = 56
HD = [64, 80]
H_XA = 96
H_W2 = 148
H_AB = 164
H_BB = 176
H_DV, H_TR = 248, 249
H_SM = 240
H_W3B = 250
h.e(f"s_sub_u32 s{S_HW}, s{S_WAVE}, 4")
h.e(f"s_mul_i32 s{S_DT}, s{S_Q}, 3")
h.e(f"s_add_u32 s{S_DT}, s{S_DT}, s{S_HW}")
h.e(f"s_cmp_eq_u32 s{S_Q}, 0")
h.e(f"s_cselect_b32 s40, 12, 13")
h.e(f"s_cmp_eq_u32 s{S_HW}, 3")
h.e(f"s_cselect_b32 s{S_DT}, s40, s{S_DT}")
h.e(f"s_mul_i32 s{S_RING}, s{S_HW}, {RING_W}")
h.e(f"s_add_u32 s{S_RING}, s{S_RING}, {RING}")
h.c("idx DMA: 2 KB per wave")
h.e(f"s_mul_i32 s40, s{S_GRP}, 6656")
h.e(f"s_lshl_b32 s41, s{S_HW}, 11")
h.e(f"s_add_u32 s40, s40, s41")
h.e(f"v_add_u32 v{H_T}, s40, v3")
h.e(f"s_add_u32 s44, s41, {IDXL}")
h.c("w1 DMA voffset: (l>>2)*832 + (l&3)*16 + dt*64")
h.e(f"v_lshrrev_b32 v{H_T+1}, 2, v{V_LANE}")
h.e(f"v_mul_u32_u24 v{H_DV}, 832, v{H_T+1}")
h.e(f"v_and_b32 v{H_T+2}, 3, v{V_LANE}")
h.e(f"v_lshl_add_u32 v{H_DV}, v{H_T+2}, 4, v{H_DV}")
h.e(f"s_lshl_b32 s40, s{S_DT}, 6")
h.e(f"v_add_u32 v{H_DV}, s40, v{H_DV}")
srd_setup(h)
tok_tab_h = table_dma(h)
h.e(f"s_mov_b32 m0, s44")
h.e("s_nop 0")
h.vmem(f"buffer_load_dwordx4 v{H_T}, {sr(SRD_IDX,4)}, 0 offen lds")
tok_hidx = h.vmem(f"buffer_load_dwordx4 v{H_T}, {sr(SRD_IDX,4)}, 0 offen offset:1024 lds")
tok_ring = {}
def ring_dma(a, j):
    a.e(f"s_add_u32 m0, s{S_RING}, {(j % RING_SLOTS) * 1024}")
    a.e(f"s_mov_b32 s41, {j*16*832}")
    tok_ring[j] = a.vmem(f"buffer_load_dwordx4 v{H_DV}, {sr(SRD_W1,4)}, s41 offen lds")
h.c("small loads")
h.e(f"v_lshlrev_b32 v{H_T}, 2, v{V_LANE}")
h.e(f"v_add_u32 v{H_T+1}, L_pwtab-L_pc, v{H_T}")
tok_pwt = h.vmem(f"global_load_dword v{H_PWA}, v{H_T+1}, {sr(P_PC,2)}")
tok_w4 = h.vmem(f"buffer_load_dword v{H_SM+2}, v{H_T}, {sr(SRD_WO,4)}, 0 offen offset:208")
h.e(f"v_and_b32 v{H_T}, 31, v{V_LANE}")
h.e(f"s_min_u32 s40, s{S_DT}, 12")
h.e(f"s_lshl_b32 s40, s40, 6")
h.e(f"v_lshl_add_u32 v{H_T}, v{H_T}, 1, s40")
tok_b1 = h.vmem(f"global_load_ushort v{H_SM}, v{H_T}, {sr(P_B1,2)}")
tok_w2 = h.vmem(f"global_load_ushort v{H_SM+1}, v{H_T}, {sr(P_W2,2)}")
h.e(f"v_lshrrev_b32 v{H_T+1}, 4, v{V_LANE}")
h.e(f"v_lshlrev_b32 v{H_T+1}, 4, v{H_T+1}")
tok_w5 = h.vmem(f"buffer_load_dwordx4 {vr(H_SM+4,4)}, v{H_T+1}, {sr(SRD_WO,4)}, 0 offen offset:260")
h.e(f"v_bfe_u32 v{H_T+1}, v0, 4, 4")
h.e(f"v_add_u32 v{H_T+2}, 16, v{H_T+1}")
h.e(f"v_min_u32 v{H_T+2}, 25, v{H_T+2}")
h.e(f"v_lshlrev_b32 v{H_T+1}, 1, v{H_T+1}")
h.e(f"v_lshlrev_b32 v{H_T+2}, 1, v{H_T+2}")
h.vmem(f"global_load_ushort v{H_SM+3}, v{H_T+1}, {sr(P_WO,2)} offset:156")
tok_w3 = h.vmem(f"global_load_ushort v{H_W3B}, v{H_T+2}, {sr(P_WO,2)} offset:156")
for j in range(RING_SLOTS): ring_dma(h, j)
h.c("conversion addressing")
h.e(f"v_and_b32 v{H_T}, 255, v0")
h.e(f"v_min_u32 v{H_T+1}, 233, v{H_T}")
h.e(f"v_mul_u32_u24 v{H_T+2}, 841, v{H_T+1}")
h.e(f"v_lshrrev_b32 v{H_T+2}, 16, v{H_T+2}")
h.e(f"v_mul_u32_u24 v{H_T+3}, 78, v{H_T+2}")
h.e(f"v_sub_u32 v{H_T+3}, v{H_T+1}, v{H_T+3}")
h.e(f"v_mul_u32_u24 v{H_GM}, 1352, v{H_T+2}")
h.e(f"v_lshl_add_u32 v{H_GM}, v{H_T+3}, 4, v{H_GM}")
h.e(f"v_mul_u32_u24 v{H_LM}, {WROW}, v{H_T+2}")
h.e(f"v_lshl_add_u32 v{H_LM}, v{H_T+3}, 4, v{H_LM}")
h.e(f"v_mov_b32 v{H_T+4}, 0x40000000")
h.e(f"v_cmp_eq_u32 vcc, 2, v{H_T+2}")
h.e(f"v_lshrrev_b32 v{H_T+1}, 3, v{H_T}")
h.e(f"v_min_u32 v{H_T+1}, 26, v{H_T+1}")
h.e(f"v_cndmask_b32 v{H_GM8}, v{H_GM}, v{H_T+4}, vcc")
h.e(f"v_bfe_u32 v{H_T+2}, v{H_T}, 2, 1")
h.e(f"v_and_b32 v{H_T+3}, 3, v{H_T}")
h.e(f"v_mul_u32_u24 v{H_GT}, 1352, v{H_T+1}")
h.e(f"v_mul_u32_u24 v{H_T+5}, 52, v{H_T+2}")
h.e(f"v_add_u32 v{H_GT}, v{H_GT}, v{H_T+5}")
h.e(f"v_lshl_add_u32 v{H_GT}, v{H_T+3}, 4, v{H_GT}")
h.e(f"v_add_u32 v{H_GT}, 1248, v{H_GT}")
h.e(f"v_cmp_eq_u32 vcc, 26, v{H_T+1}")
h.e(f"v_mul_u32_u24 v{H_LT4}, {WROW}, v{H_T+1}")
h.e(f"v_mul_u32_u24 v{H_T+5}, 80, v{H_T+2}")
h.e(f"v_cndmask_b32 v{H_GT}, v{H_GT}, v{H_T+4}, vcc")
h.e(f"v_add_u32 v{H_LT4}, v{H_LT4}, v{H_T+5}")
h.e(f"v_add_u32 v{H_LT4}, 1248, v{H_LT4}")
h.e(f"v_lshl_add_u32 v{H_LT}, v{H_T+3}, 4, v{H_LT4}")
h.e(f"v_add_u32 v{H_LT4}, 64, v{H_LT4}")
h.e(f"v_cmp_eq_u32 vcc, 3, v{H_T+3}")
h.e(f"v_mov_b32 v{H_T+5}, -1")
for k in range(4): h.e(f"v_mov_b32 v{H_Z4+k}, 0")
h.e(f"v_cndmask_b32 v{H_MSK}, v{H_T+5}, v{H_Z4}, vcc")

def wl_issue1(a, l, it):
    if it < 9:
        a.e(f"s_mov_b32 s41, {l*35152 + it*3*1352}")
        return a.vmem(f"buffer_load_dwordx4 {vr(H_WL+4*it,4)}, v{H_GM8 if it == 8 else H_GM}, {sr(SRD_W,4)}, s41 offen")
    a.e(f"s_mov_b32 s41, {l*35152}")
    return a.vmem(f"buffer_load_dwordx4 {vr(H_WL+36,4)}, v{H_GT}, {sr(SRD_W,4)}, s41 offen")
def wl_issue(a, l):
    return [wl_issue1(a, l, it) for it in range(10)]
def wl_convert(a, toks, base, l):
    a.e(f"v_add_u32 v{H_T+6}, {base}, v{H_LM}")
    a.e(f"v_add_u32 v{H_T+7}, {base}, v{H_LT}")
    for it in range(10):
        if toks: a.wait_vm(toks[it])
        for k in range(4):
            r = H_WL + 4 * it + k
            cvt2(a, r, r, H_T + 2 * (k % 2), H_T + 1 + 2 * (k % 2))
            if it == 9 and k > 0: a.e(f"v_and_b32 v{r}, v{H_MSK}, v{r}")
        if it < 9:
            a.dsop(f"ds_write_b128 v{H_T+6}, {vr(H_WL+4*it,4)} offset:{it*3*WROW}")
        else:
            a.dsop(f"ds_write_b128 v{H_T+7}, {vr(H_WL+36,4)}")
            a.e(f"v_add_u32 v{H_T+7}, {base}, v{H_LT4}")
            a.dsop(f"ds_write_b128 v{H_T+7}, {vr(H_Z4,4)}")
    lab = f"L_pw{l}"
    a.e(f"s_cmp_lg_u32 s{S_WAVE}, 7")
    a.e(f"s_cbranch_scc1 {lab}")
    m = ((1 << 14) - 1) << (14 * (l - 1))
    a.e(f"v_add_u32 v{H_T+7}, {base + 26*WROW + 1248}, v{H_PWA}")
    a.e(f"s_mov_b32 exec_lo, {m & 0xffffffff:#x}")
    a.e(f"s_mov_b32 exec_hi, {m >> 32:#x}")
    a.e(f"ds_write_b32 v{H_T+7}, v{H_PW}")
    a.e(f"s_mov_b64 exec, -1")
    a.label(lab)
    a.wait_all_ds()

h.c("DNN tr-read address, idx LDS address")
h.e(f"v_lshrrev_b32 v{H_T}, 5, v{V_LANE}")
h.e(f"v_bfe_u32 v{H_T+1}, v{V_LANE}, 4, 1")
h.e(f"v_bfe_u32 v{H_T+2}, v{V_LANE}, 2, 2")
h.e(f"v_and_b32 v{H_T+3}, 3, v{V_LANE}")
h.e(f"v_lshl_add_u32 v{H_T+4}, v{H_T}, 3, v{H_T+2}")
h.e(f"v_lshlrev_b32 v{H_T+5}, 5, v{H_T+1}")
h.e(f"v_lshl_add_u32 v{H_T+5}, v{H_T+3}, 3, v{H_T+5}")
h.e(f"v_lshl_add_u32 v{H_TR}, v{H_T+4}, 6, v{H_T+5}")
h.e(f"v_add_u32 v{H_TR}, s{S_RING}, v{H_TR}")
h.e(f"v_lshlrev_b32 v{H_T+6}, 4, v{H_T}")
h.e(f"v_and_b32 v{H_T+7}, 31, v{V_LANE}")
h.e(f"v_mul_u32_u24 v{H_T+7}, 104, v{H_T+7}")
h.e(f"v_add_u32 v{H_T+7}, {IDXL}, v{H_T+7}")
h.c("zero the sync counters and UT (wave 4)")
h.e(f"s_cmp_lg_u32 s{S_WAVE}, 4")
h.e(f"s_cbranch_scc1 L_noinit")
h.e(f"v_lshlrev_b32 v{H_T}, 4, v{V_LANE}")
h.e(f"v_add_u32 v{H_T}, {UT}, v{H_T}")
h.e(f"ds_write_b128 v{H_T}, {vr(H_Z4,4)}")
h.e(f"ds_write_b128 v{H_T}, {vr(H_Z4,4)} offset:1024")
h.e(f"ds_write_b128 v{H_T}, {vr(H_Z4,4)} offset:1536")
h.e(f"v_mov_b32 v{H_T}, {CNT}")
h.e(f"ds_write_b128 v{H_T}, {vr(H_Z4,4)}")
h.label("L_noinit")
h.wait_vm(tok_hidx)
h.wait_all_ds()
stamp(h, 1)
h.e("s_barrier")
stamp(h, 2)
h.e(f"s_cmp_gt_u32 s{S_DT}, 12")
h.e("s_cbranch_scc1 L_nodnn1")
hsave = (h.vm, h.ds, h.vm_done, h.ds_done)
for rt in range(2):
    for k in range(6):
        h.dsop(f"ds_read_b128 {vr(H_XA+26*rt+4*k,4)}, v{H_T+7} offset:{3328*rt+16*k}")
    tk_hi = h.dsop(f"ds_read_b64 {vr(H_XA+26*rt+24,2)}, v{H_T+7} offset:{3328*rt+96}")
h.c("bias / w2 table")
h.wait_vm(tok_w2)
h.e(f"v_cmp_gt_u32 vcc, 32, v{V_LANE}")
h.e(f"s_lshl_b32 s40, s{S_HW}, 8")
h.e(f"s_add_u32 s40, s40, {BW}")
h.e(f"v_cndmask_b32 v{H_SM}, v{H_SM+1}, v{H_SM}, vcc")
h.e(f"v_lshlrev_b32 v{H_SM}, 16, v{H_SM}")
h.e(f"v_lshl_add_u32 v{H_T}, v{V_LANE}, 2, s40")
h.dsop(f"ds_write_b32 v{H_T}, v{H_SM}")
h.e(f"v_add_u32 v{H_T}, s40, v{H_T+6}")
h.wait_ds(tk_hi)
for g4 in range(4):
    h.dsop(f"ds_read_b128 {vr(HD[0]+4*g4,4)}, v{H_T} offset:{32*g4}")
    h.dsop(f"ds_read_b128 {vr(HD[1]+4*g4,4)}, v{H_T} offset:{32*g4}")
    h.dsop(f"ds_read_b128 {vr(H_W2+4*g4,4)}, v{H_T} offset:{128+32*g4}")
def xaddr(j):
    h.e(f"v_lshl_add_u32 v{H_XA+j}, v{H_XA+j}, 5, v{H_T+6}")
    h.e(f"v_lshl_add_u32 v{H_XA+26+j}, v{H_XA+26+j}, 5, v{H_T+6}")
h.c("DNN K loop")
dtok = {}
def dnn_reads(j):
    xaddr(j)
    h.wait_vm(tok_ring[j])
    ab = H_AB + 4 * (j % 3)
    so = (j % RING_SLOTS) * 1024
    h.dsop(f"ds_read_b64_tr_b16 {vr(ab,2)}, v{H_TR} offset:{so}")
    h.dsop(f"ds_read_b64_tr_b16 {vr(ab+2,2)}, v{H_TR} offset:{so+256}")
    bb = H_BB + 8 * (j % 3)
    h.dsop(f"ds_read_b128 {vr(bb,4)}, v{H_XA+j}")
    dtok[j] = h.dsop(f"ds_read_b128 {vr(bb+4,4)}, v{H_XA+26+j}")
dnn_reads(0); dnn_reads(1)
for j in range(26):
    if j + 2 < 26: dnn_reads(j + 2)
    h.wait_ds(dtok[j])
    ab = H_AB + 4 * (j % 3); bb = H_BB + 8 * (j % 3)
    h.e(f"v_mfma_f32_32x32x16_bf16 {vr(HD[0],16)}, {vr(ab,4)}, {vr(bb,4)}, {vr(HD[0],16)}")
    if j + RING_SLOTS < 26: ring_dma(h, j + RING_SLOTS)
    h.e(f"v_mfma_f32_32x32x16_bf16 {vr(HD[1],16)}, {vr(ab,4)}, {vr(bb+4,4)}, {vr(HD[1],16)}")
    if 12 <= j < 22: wl_issue1(h, 1, j - 12)
h.e("s_branch L_dnn1done")
h.label("L_nodnn1")
h.e("s_waitcnt vmcnt(0)")
wl_issue(h, 1)
h.label("L_dnn1done")
stamp(h, 3)
h.c("pooled weights")
h.e(f"v_and_b32 v{H_T}, 0xff, v{H_PWA}")
h.e(f"v_lshlrev_b32 v{H_T}, 2, v{H_T}")
h.e(f"global_load_dword v{H_PW}, v{H_T}, {sr(P_WO,2)}")
h.c("w4 row of UT, A_t fragments for the U gemm")
h.e(f"s_mov_b32 s40, {USCALE_BITS:#x}")
h.e(f"v_pk_add_u16 v{H_SM+2}, v{H_SM+2}, s40")
h.e(f"v_lshlrev_b32 v{H_T}, 2, v{V_LANE}")
h.e(f"v_add_u32 v{H_T}, {UT + 26*UT_ROW}, v{H_T}")
h.e(f"s_mov_b64 exec, 0x1fff")
h.dsop(f"ds_write_b32 v{H_T}, v{H_SM+2}")
h.e(f"s_mov_b64 exec, -1")
H_UA = H_BB
h.e(f"v_and_b32 v{H_T}, 15, v{V_LANE}")
for k in range(4): h.e(f"v_pk_add_u16 v{H_SM+4+k}, v{H_SM+4+k}, s40")
for t in range(4):
    h.e(f"v_cmp_eq_u32 vcc, {4*t}, v{H_T}")
    h.e("s_nop 1")
    for k in range(4):
        h.e(f"v_cndmask_b32 v{H_UA+4*t+k}, v{H_Z4}, v{H_SM+4+k}, vcc")
h.wait_all_vm()
h.e(f"v_lshlrev_b32 v{H_T}, 16, v{H_PW}")
h.e(f"v_and_b32 v{H_T+1}, 0xffff0000, v{H_PW}")
h.e(f"v_bfe_u32 v{H_T+2}, v{H_PWA}, 16, 2")
h.e(f"v_cmp_eq_u32 vcc, 2, v{H_T+2}")
h.e("s_nop 1")
h.e(f"v_cndmask_b32 v{H_T}, v{H_T}, v{H_T+1}, vcc")
h.e(f"v_cmp_eq_u32 vcc, 0, v{H_T+2}")
h.e("s_nop 1")
h.e(f"v_cndmask_b32 v{H_T+1}, v{H_Z4}, v{H_T+1}, vcc")
h.e(f"v_cvt_pk_f16_f32 v{H_PW}, v{H_T}, v{H_T+1}")
h.e(f"v_bfe_u32 v{H_PWA}, v{H_PWA}, 8, 8")
wl_convert(h, None, RB, 1)
tw2 = wl_issue(h, 2)
stamp(h, 5)
h.e("s_barrier")
stamp(h, 6)
h.c("stage W_5 -> X, W_4 -> Y (linear)")
h.e(f"s_lshl_b32 s40, s{S_HW}, 10")
h.e(f"v_lshlrev_b32 v{H_T}, 4, v{V_LANE}")
h.e(f"v_add_u32 v{H_T}, s40, v{H_T}")
for l, base in ((5, XREG), (4, YREG)):
    for k in range(9):
        h.e(f"s_add_u32 m0, s40, {base + 4096*k}")
        h.e(f"s_mov_b32 s41, {l*35152 + 4096*k}")
        tok_stg = h.vmem(f"buffer_load_dwordx4 v{H_T}, {sr(SRD_W,4)}, s41 offen lds")

K0 = -2.0 * 0.7978845608028654 * 1.4426950408889634
import struct
def f2u(x): return struct.unpack("<I", struct.pack("<f", x))[0]
G = V_ST
def gelu_part(a, rt, tag):
    a.e(f"s_cmp_gt_u32 s{S_DT}, 12")
    a.e(f"s_cbranch_scc1 L_nog{tag}")
    a.e(f"s_mov_b32 s40, {f2u(K0*0.044715):#x}")
    a.e(f"v_mov_b32 v{G+7}, {f2u(K0):#x}")
    for r0 in range(0, 16, 4):
        xs = [HD[rt] + r0 + k for k in range(4)]
        for k in range(4): a.e(f"v_mul_f32 v{G+k}, v{xs[k]}, v{xs[k]}")
        for k in range(4): a.e(f"v_fma_f32 v{G+k}, v{G+k}, s40, v{G+7}")
        for k in range(4): a.e(f"v_mul_f32 v{G+k}, v{xs[k]}, v{G+k}")
        for k in range(4): a.e(f"v_exp_f32 v{G+k}, v{G+k}")
        for k in range(4): a.e(f"v_add_f32 v{G+k}, 1.0, v{G+k}")
        for k in range(4): a.e(f"v_rcp_f32 v{G+k}, v{G+k}")
        for k in range(4): a.e(f"v_mul_f32 v{xs[k]}, v{xs[k]}, v{H_W2+r0+k}")
        for k in range(4): a.e(f"v_fmac_f32 v{G+8+rt}, v{xs[k]}, v{G+k}")
    a.label(f"L_nog{tag}")
h.e(f"v_mov_b32 v{G+8}, 0")
h.e(f"v_mov_b32 v{G+9}, 0")
gelu_part(h, 0, "a")
h.c("U / Q gemm addressing")
H_U0, H_U1, H_Q0, H_Q1, H_Q2 = 96, 97, 98, 99, 100
h.e(f"v_bfe_u32 v{H_T}, v{V_LANE}, 2, 2")
h.e(f"v_and_b32 v{H_T+1}, 3, v{V_LANE}")
h.e(f"v_lshlrev_b32 v{H_T+1}, 3, v{H_T+1}")
h.e(f"s_lshl_b32 s40, s{S_HW}, 7")
h.e(f"v_add_u32 v{H_T+1}, s40, v{H_T+1}")
h.e(f"v_lshrrev_b32 v{H_T+2}, 4, v{V_LANE}")
h.e(f"v_lshl_add_u32 v{H_T+2}, v{H_T+2}, 3, v{H_T}")
h.e(f"v_min_u32 v{H_T+3}, 25, v{H_T+2}")
h.e(f"v_mul_u32_u24 v{H_T+3}, 1352, v{H_T+3}")
h.e(f"v_add3_u32 v{H_U0}, v{H_T+3}, v{H_T+1}, {XREG}")
h.e(f"v_add_u32 v{H_T+2}, 4, v{H_T+2}")
h.e(f"v_min_u32 v{H_T+3}, 25, v{H_T+2}")
h.e(f"v_mul_u32_u24 v{H_T+3}, 1352, v{H_T+3}")
h.e(f"v_add3_u32 v{H_U1}, v{H_T+3}, v{H_T+1}, {XREG}")
h.e(f"v_bfe_u32 v{H_T+2}, v{V_LANE}, 4, 1")
h.e(f"v_lshl_add_u32 v{H_T+1}, v{H_T+2}, 5, v{H_T+1}")
h.e(f"v_add_u32 v{H_T+1}, {YREG}, v{H_T+1}")
h.e(f"v_lshrrev_b32 v{H_T+2}, 5, v{V_LANE}")
h.e(f"v_lshl_add_u32 v{H_T+2}, v{H_T+2}, 3, v{H_T}")
h.e(f"v_mul_u32_u24 v{H_T+3}, 1352, v{H_T+2}")
h.e(f"v_add_u32 v{H_Q0}, v{H_T+3}, v{H_T+1}")
for reg, add in ((H_Q1, 16), (H_Q2, 20)):
    h.e(f"v_add_u32 v{H_T+3}, {add}, v{H_T+2}")
    h.e(f"v_min_u32 v{H_T+3}, 25, v{H_T+3}")
    h.e(f"v_mul_u32_u24 v{H_T+3}, 1352, v{H_T+3}")
    h.e(f"v_add_u32 v{reg}, v{H_T+3}, v{H_T+1}")
h.wait_vm(tok_stg)
stamp(h, 7)
h.e("s_barrier")
H_UB = 104
H_UD = 120
def u_reads(a, i):
    for t in range(4):
        a.dsop(f"ds_read_b64_tr_b16 {vr(H_UB+4*t,2)}, v{H_U0} offset:{512*i+32*t}")
        a.dsop(f"ds_read_b64_tr_b16 {vr(H_UB+4*t+2,2)}, v{H_U1} offset:{512*i+32*t}")
def u_step(a, i):
    u_reads(a, i)
    a.e(f"s_lshl_b32 s40, s{S_HW}, 6")
    a.e(f"s_add_u32 s40, s40, {256*i}")
    a.e(f"v_add_u32 v{H_T}, s40, v{V_LANE}")
    a.e(f"v_mul_u32_u24 v{H_T+1}, 2521, v{H_T}")
    a.e(f"v_lshrrev_b32 v{H_T+1}, 16, v{H_T+1}")
    a.e(f"v_mul_u32_u24 v{H_T+2}, 26, v{H_T+1}")
    a.e(f"v_sub_u32 v{H_T+2}, v{H_T}, v{H_T+2}")
    a.e(f"v_mul_u32_u24 v{H_T+2}, {UT_ROW}, v{H_T+2}")
    a.e(f"v_lshl_add_u32 v{H_T+2}, v{H_T+1}, 1, v{H_T+2}")
    a.e(f"v_mov_b32 v{H_T+3}, {31*UT_ROW}")
    a.e(f"v_cmp_gt_u32 vcc, 676, v{H_T}")
    a.wait_all_ds()
    for t in range(4):
        c_ = "0" if t == 0 else vr(H_UD, 4)
        a.e(f"v_mfma_f32_16x16x32_bf16 {vr(H_UD,4)}, {vr(H_UA+4*t,4)}, {vr(H_UB+4*t,4)}, {c_}")
    a.e(f"v_cndmask_b32 v{H_T+2}, v{H_T+3}, v{H_T+2}, vcc")
    a.e(f"v_add_u32 v{H_T+2}, {UT}, v{H_T+2}")
    a.e("s_nop 6")
    a.e(f"v_cvt_pk_bf16_f32 v{H_T+3}, v{H_UD}, 0")
    a.dsop(f"ds_write_b16 v{H_T+2}, v{H_T+3}")
wl_convert(h, tw2, RA, 2)
tw3 = wl_issue(h, 3)
for i in range(3): u_step(h, i)
h.wait_all_ds()
stamp(h, 8)
h.e("s_barrier")
stamp(h, 9)
h.c("Q gemm")
H_QA = 124
H_QB = 104
H_QD = [164, 180]
H_QW = 101
h.e(f"v_and_b32 v{H_T}, 31, v{V_LANE}")
h.e(f"v_lshrrev_b32 v{H_T+1}, 5, v{V_LANE}")
h.e(f"v_mul_u32_u24 v{H_T+2}, {UT_ROW}, v{H_T}")
h.e(f"v_lshl_add_u32 v{H_T+2}, v{H_T+1}, 4, v{H_T+2}")
h.e(f"v_add_u32 v{H_T+2}, {UT}, v{H_T+2}")
h.dsop(f"ds_read_b128 {vr(H_QA,4)}, v{H_T+2}")
h.dsop(f"ds_read_b128 {vr(H_QA+4,4)}, v{H_T+2} offset:32")
h.e(f"s_lshl_b32 s40, s{S_HW}, 6")
h.e(f"v_add_u32 v{H_T}, s40, v{H_T}")
h.e(f"v_mul_u32_u24 v{H_QW}, {QS_ROW}, v{H_T}")
h.e(f"v_lshl_add_u32 v{H_QW}, v{H_T+1}, 3, v{H_QW}")
def q_reads(a, i):
    for ct in range(2):
        o = 512 * i + 64 * ct
        b = H_QB + 8 * ct
        a.dsop(f"ds_read_b64_tr_b16 {vr(b,2)}, v{H_Q0} offset:{o}")
        a.dsop(f"ds_read_b64_tr_b16 {vr(b+2,2)}, v{H_Q0} offset:{o+4*1352}")
        a.dsop(f"ds_read_b64_tr_b16 {vr(b+4,2)}, v{H_Q1} offset:{o}")
        a.dsop(f"ds_read_b64_tr_b16 {vr(b+6,2)}, v{H_Q2} offset:{o}")
def q_mma(a):
    a.wait_all_ds()
    for ct in range(2):
        a.e(f"v_mfma_f32_32x32x16_bf16 {vr(H_QD[ct],16)}, {vr(H_QA,4)}, {vr(H_QB+8*ct,4)}, 0")
        a.e(f"v_mfma_f32_32x32x16_bf16 {vr(H_QD[ct],16)}, {vr(H_QA+4,4)}, {vr(H_QB+8*ct+4,4)}, {vr(H_QD[ct],16)}")
def q_store(a, i):
    for ct in range(2):
        for k in range(8):
            a.e(f"v_cvt_pk_f16_f32 v{H_QD[ct]+k}, v{H_QD[ct]+2*k}, v{H_QD[ct]+2*k+1}")
        o = QS + (256 * i + 32 * ct) * QS_ROW
        for g4 in range(3):
            a.dsop(f"ds_write_b64 v{H_QW}, {vr(H_QD[ct]+2*g4,2)} offset:{o+16*g4}")
        a.e("s_mov_b32 exec_hi, 0")
        a.dsop(f"ds_write_b64 v{H_QW}, {vr(H_QD[ct]+6,2)} offset:{o+48}")
        a.e("s_mov_b32 exec_hi, -1")
q_reads(h, 0); q_mma(h)
q_reads(h, 1); h.e("s_nop 4"); q_store(h, 0); q_mma(h)
h.e(f"s_cmp_eq_u32 s{S_HW}, 3")
h.e("s_cbranch_scc1 L_q2skip")
q_reads(h, 2); h.e("s_nop 4"); q_store(h, 1); q_mma(h)
h.e("s_nop 12")
q_store(h, 2)
h.e("s_branch L_q2done")
h.label("L_q2skip")
h.e("s_nop 12")
q_store(h, 1)
h.label("L_q2done")
h.wait_all_ds()
h.e("s_barrier")
wl_convert(h, tw3, RB, 3)
gelu_part(h, 1, "b")
h.e(f"s_lshl_b32 s40, s{S_HW}, 8")
h.e(f"s_add_u32 s40, s40, {PART}")
h.e(f"v_lshl_add_u32 v{G}, v{V_LANE}, 2, s40")
h.e(f"v_permlane32_swap_b32 v{G+8}, v{G+9}")
h.e("s_nop 1")
h.e(f"v_add_f32 v{G+8}, v{G+8}, v{G+9}")
h.dsop(f"ds_write_b32 v{G}, v{G+8}")
h.wait_all_ds()
stamp(h, 10)
h.e("s_barrier")
stamp(h, 11)
h.c("lin slots")
H_LI = 96
h.e(f"v_and_b32 v{H_T}, 255, v0")
h.e(f"v_lshrrev_b32 v{H_T+1}, 4, v{H_T}")
h.e(f"v_add_u32 v{H_T+2}, 16, v{H_T+1}")
h.e(f"v_min_u32 v{H_T+2}, 25, v{H_T+2}")
h.e(f"v_bfe_u32 v{H_T+3}, v{H_T}, 3, 1")
h.e(f"v_and_b32 v{H_T+4}, 7, v{H_T}")
h.e(f"v_min_u32 v{H_T+5}, 6, v{H_T+4}")
h.e(f"v_lshl_add_u32 v{H_T+5}, v{H_T+5}, 2, v{H_T+3}")
h.e(f"v_min_u32 v{H_T+6}, 5, v{H_T+4}")
h.e(f"v_lshl_add_u32 v{H_T+6}, v{H_T+6}, 2, v{H_T+3}")
for ps in range(2):
    iv = H_T + 1 + ps
    h.e(f"v_mul_u32_u24 v{H_T+7}, 26, v{iv}")
    h.e(f"v_add_u32 v{H_LI+2+2*ps}, v{H_T+7}, v{H_T+5}")
    h.e(f"v_mul_u32_u24 v{H_LI+2+2*ps}, {QS_ROW}, v{H_LI+2+2*ps}")
    h.e(f"v_add_u32 v{H_LI+3+2*ps}, v{H_T+7}, v{H_T+6}")
    h.e(f"v_mul_u32_u24 v{H_LI+3+2*ps}, {QS_ROW}, v{H_LI+3+2*ps}")
    h.dsop(f"ds_read_u16 v{H_LI+10+2*ps}, v{H_LI+2+2*ps} offset:{QS+52}")
    h.dsop(f"ds_read_u16_d16_hi v{H_LI+11+2*ps}, v{H_LI+3+2*ps} offset:{QS+52+2*QS_ROW}")
    h.e(f"v_mul_u32_u24 v{H_LI+6+ps}, {QROW}, v{iv}")
    h.e(f"v_mul_u32_u24 v{H_T+7}, 400, v{H_T+3}")
    h.e(f"v_add_u32 v{H_LI+6+ps}, v{H_LI+6+ps}, v{H_T+7}")
    h.e(f"v_lshl_add_u32 v{H_LI+6+ps}, v{H_T+4}, 2, v{H_LI+6+ps}")
    h.e(f"v_add_u32 v{H_LI+6+ps}, {QW1 + 92*4}, v{H_LI+6+ps}")
h.e(f"v_mov_b32 v{H_LI+8}, -1")
h.e(f"v_mov_b32 v{H_T+7}, 0xffff")
h.e(f"v_cmp_eq_u32 vcc, 6, v{H_T+4}")
h.e("s_nop 1")
h.e(f"v_cndmask_b32 v{H_LI+8}, v{H_LI+8}, v{H_T+7}, vcc")
h.e(f"v_cmp_eq_u32 vcc, 7, v{H_T+4}")
h.e("s_nop 1")
h.e(f"v_cndmask_b32 v{H_LI+8}, v{H_LI+8}, v{H_Z4}, vcc")
h.e(f"v_and_b32 v{H_T+7}, 15, v{H_T}")
h.e(f"v_cmp_eq_u32 vcc, 6, v{H_T+7}")
for ps, src in ((0, H_SM + 3), (1, H_W3B)):
    h.e(f"v_lshlrev_b32 v{H_LI+ps}, 16, v{src}")
    h.e(f"v_mul_f32 v{H_LI+ps}, 0x43800000, v{H_LI+ps}")
    h.e(f"v_cvt_pk_f16_f32 v{H_LI+ps}, 0, v{H_LI+ps}")
    h.e(f"v_cndmask_b32 v{H_LI+ps}, v{H_Z4}, v{H_LI+ps}, vcc")
h.wait_all_ds()
for ps in range(2):
    h.e(f"v_and_b32 v{H_LI+11+2*ps}, 0xffff0000, v{H_LI+11+2*ps}")
    h.e(f"v_or_b32 v{H_LI+10+2*ps}, v{H_LI+10+2*ps}, v{H_LI+11+2*ps}")
    h.e(f"v_and_or_b32 v{H_LI+10+2*ps}, v{H_LI+10+2*ps}, v{H_LI+8}, v{H_LI+ps}")
    h.dsop(f"ds_write_b32 v{H_LI+6+ps}, v{H_LI+10+2*ps}")
sel_setup(h)
sym_addr_setup(h, 56, QS, 26 * QS_ROW, QW1)
h.e("s_barrier")
sym_run(h, 56, 26 * QS_ROW)
h.wait_all_ds()
stamp(h, 12)
h.e("s_barrier")
if DEBUG == "lds":
    h.e(f"s_cmp_lg_u32 s{S_WG}, 0")
    h.e("s_cbranch_scc1 L_nold")
    h.e(f"v_and_b32 v60, 255, v0")
    h.e(f"v_lshlrev_b32 v60, 4, v60")
    h.e(f"v_add_u32 v61, 0x400000, v60")
    for k in range(40):
        h.e(f"ds_read_b128 v[64:67], v60")
        h.e("s_waitcnt lgkmcnt(0)")
        h.e(f"global_store_dwordx4 v61, v[64:67], {sr(P_WS,2)}")
        h.e(f"v_add_u32 v60, 4096, v60")
        h.e(f"v_add_u32 v61, 4096, v61")
        h.e("s_waitcnt vmcnt(0)")
    h.label("L_nold")
h.e(f"s_cmp_lg_u32 s{S_WAVE}, 4")
h.e("s_cbranch_scc1 L_hfin")
h.c("poll the group counter (temporary: spin), fetch DNN partials")
h.e(f"s_lshl_b32 s40, s{S_GRP}, 2")
h.e(f"v_mov_b32 v{H_T}, s40")
h.e(f"s_lshl_b32 s41, s{S_Q}, 3")
h.e(f"v_mov_b32 v{G}, 0")
h.e(f"global_load_ushort v{G+1}, v{G}, {sr(P_BO,2)}")
h.label("L_poll")
h.e(f"global_load_dword v{H_T+1}, v{H_T}, {sr(P_DBG,2)} sc1")
h.e("s_waitcnt vmcnt(0)")
h.e(f"v_readfirstlane_b32 s40, v{H_T+1}")
h.e("s_lshr_b32 s40, s40, s41")
h.e("s_and_b32 s40, s40, 0xff")
h.e("s_cmp_lt_u32 s40, 4")
h.e("s_cbranch_scc1 L_poll")
h.e(f"v_lshrrev_b32 v{H_T}, 4, v{V_LANE}")
h.e(f"v_and_b32 v{H_T+1}, 15, v{V_LANE}")
h.e(f"v_lshlrev_b32 v{H_T+2}, 8, v{H_T}")
h.e(f"v_lshl_add_u32 v{H_T+2}, v{H_T+1}, 2, v{H_T+2}")
h.e(f"s_lshl_b32 s40, s{S_GRP}, 10")
h.e(f"s_lshl_b32 s41, s{S_Q}, 6")
h.e(f"s_add_u32 s40, s40, s41")
h.e(f"v_add_u32 v{H_T+2}, s40, v{H_T+2}")
h.e(f"global_load_dword v{H_T+4}, v{H_T+2}, {sr(P_WS,2)} sc1")
h.e(f"v_lshlrev_b32 v{H_T+2}, 2, v{V_LANE}")
h.e(f"v_add_u32 v{H_T+2}, {FIN}, v{H_T+2}")
h.e("s_waitcnt vmcnt(0)")
h.e(f"ds_write_b32 v{H_T+2}, v{H_T+4}")
h.e(f"v_lshlrev_b32 v{H_T+2}, 2, v{H_T+1}")
h.e(f"v_add_u32 v{H_T+2}, {FIN}, v{H_T+2}")
h.e(f"ds_read2_b32 {vr(H_T+4,2)}, v{H_T+2} offset0:0 offset1:16")
h.e(f"ds_read2_b32 {vr(H_T+6,2)}, v{H_T+2} offset0:32 offset1:48")
h.e(f"v_lshlrev_b32 v{G+1}, 16, v{G+1}")
h.e(f"v_lshlrev_b32 v{H_T+3}, 3, v{H_T+1}")
h.e(f"v_add_u32 v{H_T+3}, {CINP}, v{H_T+3}")
h.e("s_waitcnt lgkmcnt(0)")
h.e(f"v_add_f32 v{H_T+4}, v{H_T+4}, v{H_T+5}")
h.e(f"v_add_f32 v{H_T+6}, v{H_T+6}, v{H_T+7}")
h.e(f"v_add_f32 v{H_T+4}, v{H_T+4}, v{H_T+6}")
h.e(f"v_add_f32 v{G+1}, v{G+1}, v{H_T+4}")
h.e(f"s_lshl_b32 s40, s{S_WG}, 5")
h.e(f"v_lshl_add_u32 v{G+2}, v{H_T+1}, 1, s40")
stamp(h, 13)
h.e("s_barrier")
h.e(f"ds_read_b64 {vr(H_T+4,2)}, v{H_T+3}")
h.e("s_waitcnt lgkmcnt(0)")
h.e(f"v_add_f32 v{H_T+4}, v{H_T+4}, v{H_T+5}")
h.e(f"v_add_f32 v{G+1}, v{G+1}, v{H_T+4}")
h.e(f"v_cvt_pk_bf16_f32 v{G+1}, v{G+1}, 0")
h.e("s_mov_b64 exec, 0xffff")
h.e(f"global_store_short v{G+2}, v{G+1}, {sr(P_OUT,2)}")
h.e("s_mov_b64 exec, -1")
stamp(h, 14)
dump_stamps(h, 16)
h.e("s_endpgm")
h.label("L_hfin")
h.e("s_barrier")
dump_stamps(h, 16)
h.e("s_endpgm")

items_tab = []
for n in range(128):
    if n < 91:
        q, p = ITEMS[n]; items_tab.append(q | (p << 8) | (n << 16) | ((1 << 24) if q == p else 0))
    else:
        items_tab.append(0 | (0 << 8) | (91 << 16) | (1 << 24))
pw_tab = []
for lane in range(64):
    if lane < 42:
        lp, rem = lane // 14, lane % 14
        hf, mm = rem // 7, rem % 7
        src = 13 * lp + (4 * (mm >> 1) + 2 * hf + (mm & 1) if mm < 6 else 12)
        mode = 0 if mm < 6 else (1 + hf)
        pw_tab.append(src | ((80 * hf + 52 + 4 * mm) << 8) | (mode << 16))
    else:
        pw_tab.append(0)
txt = f"""; xDeepFM (CIN + DNN) kernel, generated by dev/gen2.py
; @launch grid=(256,1,1) block=(512,1,1) lds=163840
.amdgcn_target "amdgcn-amd-amdhsa--gfx950"
.text
.globl {KN}
.p2align 8
.type {KN},@function
{KN}:
""" + a.text() + c.text() + h.text() + "L_end:\n    s_endpgm\n" + ".p2align 6\nL_items:\n" + "".join(f"    .long {x:#x}\n" for x in items_tab) + "L_pwtab:\n" + "".join(f"    .long {x:#x}\n" for x in pw_tab) + f"""L_code_end:
.section .rodata,"a"
.p2align 6
.amdhsa_kernel {KN}
  .amdhsa_next_free_vgpr 256
  .amdhsa_next_free_sgpr 102
  .amdhsa_accum_offset 256
  .amdhsa_group_segment_fixed_size 0
  .amdhsa_kernarg_size 88
  .amdhsa_user_sgpr_count 2
  .amdhsa_user_sgpr_kernarg_segment_ptr 1
  .amdhsa_system_sgpr_workgroup_id_x 1
.end_amdhsa_kernel
"""
open(OUT, "w").write(txt)
```

```python
import sys
from asmlib import *

DEBUG = None
for a_ in sys.argv[1:]:
    if a_.startswith("--dbg="): DEBUG = a_[6:]
OUT = [a_ for a_ in sys.argv[1:] if not a_.startswith("--")]
OUT = OUT[0] if OUT else "k.s"

KN = "standalone__deep_cross_xdeepfm__recsys_kernel"
T_BASE = 0
IDXL = 32768
XREG = 0
QS = 0; QS_ROW = 56
RING = 40960; RING_SLOTS = 5; RING_W = RING_SLOTS * 1024
QROW = 816
QW0 = RING + 4 * RING_W
YREG = RING
WROW = 1424
RA = QW0 + 26 * QROW
RB = RA + 27 * WROW
MISC = RB + 27 * WROW
UT = MISC; UT_ROW = 80
BW = UT + 32 * UT_ROW
PART = BW
CINP = BW + 1024
FIN = CINP + 128
CNT = FIN + 256
LDS_END = CNT + 16
assert LDS_END <= 163840, LDS_END
QW1 = RA
S_WG, S_WAVE = 2, 3
SRD_IDX, SRD_TAB, SRD_W = 4, 8, 12
P_IDX, P_TAB, P_W, P_WO, P_W1, P_B1, P_W2, P_BO, P_OUT, P_DBG, P_WS, P_PC = 16, 18, 20, 22, 24, 26, 28, 30, 32, 34, 36, 38
SRD_W1, SRD_WO = 48, 52
S_DT, S_HW, S_GRP, S_Q = 46, 47, 56, 57
S_RING = 58
ITEMS = [(q, p) for q in range(13) for p in range(q, 13)]
USCALE_BITS = 0x04000400
V_TID, V_LANE = 0, 1
V_AS, V_AM, V_AT = 2, 3, 4
V_PL = [5, 6]; V_CHK = 7
V_T0 = 8
D = [16, 32]; E = [48, 64]
ABUF = 80
Z = [96, 100]
TK = [104, 112]
XA = [120, 128]
P = [136, 150]
V_IDX = 164
V_W0 = 16
V_ITEM = 200; V_SR, V_SC, V_SD, V_SELL, V_SELH = 201, 202, 203, 204, 205
V_CNT, V_ONE = 206, 207
V_ST = 208
V_PF = 255

def cvt2(a, dst, src, t0, t1):
    a.e(f"v_lshlrev_b32 v{t0}, 16, v{src}")
    a.e(f"v_and_b32 v{t1}, 0xffff0000, v{src}")
    a.e(f"v_cvt_pk_f16_f32 v{dst}, v{t0}, v{t1}")

def pkmul(a, dst, xa, hi, p):
    h_ = 1 if hi else 0
    a.e(f"v_pk_mul_f16 v{dst}, v{xa}, v{p} op_sel:[{h_},0] op_sel_hi:[{h_},1]")

def sym_addr_setup(a, astride, src_base, hstride_src, dst_base):
    t0, t1, t2, t3 = V_ST, V_ST + 1, V_ST + 2, V_ST + 3
    a.e(f"v_and_b32 v{t0}, 0xff, v{V_ITEM}")
    a.e(f"v_bfe_u32 v{t1}, v{V_ITEM}, 8, 8")
    a.e(f"v_bfe_u32 v{t2}, v{V_ITEM}, 16, 8")
    a.e(f"v_bfe_u32 v{t3}, v{V_TID}, 7, 1")
    a.e(f"v_mul_u32_u24 v{V_SR}, {2*astride}, v{t0}")
    a.e(f"v_lshl_add_u32 v{V_SR}, v{t1}, 2, v{V_SR}")
    a.e(f"v_mul_u32_u24 v{V_SC}, {2*astride}, v{t1}")
    a.e(f"v_lshl_add_u32 v{V_SC}, v{t0}, 2, v{V_SC}")
    a.e(f"v_mul_u32_u24 v{t0}, {hstride_src}, v{t3}")
    a.e(f"v_add_u32 v{t0}, {src_base}, v{t0}")
    a.e(f"v_add_u32 v{V_SR}, v{V_SR}, v{t0}")
    a.e(f"v_add_u32 v{V_SC}, v{V_SC}, v{t0}")
    a.e(f"v_mul_u32_u24 v{t0}, {QROW}, v{t3}")
    a.e(f"v_lshl_add_u32 v{V_SD}, v{t2}, 2, v{t0}")
    a.e(f"v_add_u32 v{V_SD}, {dst_base}, v{V_SD}")

def sel_setup(a):
    a.e(f"v_mov_b32 v{V_ST}, 0x0c0c0c0c")
    a.e(f"v_mov_b32 v{V_SELL}, 0x05040100")
    a.e(f"v_mov_b32 v{V_SELH}, 0x07060302")
    a.e(f"v_cmp_gt_u32 vcc, 0x1000000, v{V_ITEM}")
    a.e("s_nop 1")
    a.e(f"v_cndmask_b32 v{V_SELL}, v{V_ST}, v{V_SELL}, vcc")
    a.e(f"v_cndmask_b32 v{V_SELH}, v{V_ST}, v{V_SELH}, vcc")

def sym_run(a, astride, hstride_src, filler=None):
    toks = {}
    filler = list(filler or [])
    def issue(it):
        b = V_ST + 4 + 4 * (it % 4)
        o = it * 2 * hstride_src
        a.dsop(f"ds_read_b32 v{b}, v{V_SR} offset:{o}")
        a.dsop(f"ds_read_b32 v{b+1}, v{V_SR} offset:{o+astride}")
        a.dsop(f"ds_read_b32 v{b+2}, v{V_SC} offset:{o}")
        toks[it] = a.dsop(f"ds_read_b32 v{b+3}, v{V_SC} offset:{o+astride}")
    ahead = 2
    for it in range(ahead): issue(it)
    per = (len(filler) + 12) // 13
    for it in range(13):
        if it + ahead < 13: issue(it + ahead)
        for _ in range(per):
            if filler: a.e(filler.pop(0))
        b = V_ST + 4 + 4 * (it % 4)
        t0, t1 = V_ST + 20 + 2 * (it % 2), V_ST + 21 + 2 * (it % 2)
        a.wait_ds(toks[it])
        a.e(f"v_perm_b32 v{t0}, v{b+3}, v{b+2}, v{V_SELL}")
        a.e(f"v_perm_b32 v{t1}, v{b+3}, v{b+2}, v{V_SELH}")
        a.e(f"v_pk_add_f16 v{t0}, v{b}, v{t0}")
        a.e(f"v_pk_add_f16 v{t1}, v{b+1}, v{t1}")
        o = it * 2 * QROW
        a.dsop(f"ds_write_b32 v{V_SD}, v{t0} offset:{o}")
        a.dsop(f"ds_write_b32 v{V_SD}, v{t1} offset:{o+400}")
    assert not filler

def stage_S(a, acc, lin):
    nkb = 25 if lin else 23
    toks = {}
    def aread(kb):
        toks[kb] = a.dsop(f"ds_read_b128 {vr(ABUF + 4*(kb%4), 4)}, v{V_AS} offset:{16*kb}")
    def zgen(g, kb):
        if kb >= 23: return
        for t in range(4):
            n = 4 * kb + t
            if n < 91:
                q, p = ITEMS[n]
                pkmul(a, Z[g] + t, XA[g] + (q >> 1), q & 1, P[g] + p)
            else:
                a.e(f"v_mov_b32 v{Z[g]+t}, 0")
    for kb in range(3): aread(kb)
    zgen(0, 0); zgen(1, 0)
    for kb in range(nkb):
        a.wait_ds(toks[kb])
        ab = vr(ABUF + 4 * (kb % 4), 4)
        for g in range(2):
            b = vr(Z[g], 4) if kb < 23 else vr(XA[g] + 4 * (kb - 23), 4)
            c_ = "0" if kb == 0 else vr(acc[g], 16)
            a.e(f"v_mfma_f32_32x32x16_f16 {vr(acc[g],16)}, {ab}, {b}, {c_}")
            if g == 0 and kb + 3 < nkb: aread(kb + 3)
            zgen(g, kb + 1)

def stage_L(a, mid=None):
    nkb = 44
    toks = {}
    def aread(kb):
        if kb < 39:
            o = (kb // 13) * 416 + (kb % 13) * 16
            toks[kb] = a.dsop(f"ds_read_b128 {vr(ABUF + 4*(kb%4), 4)}, v{V_AM} offset:{o}")
        else:
            toks[kb] = a.dsop(f"ds_read_b128 {vr(ABUF + 4*(kb%4), 4)}, v{V_AT} offset:{16*(kb-39)}")
    def zgen(g, kb):
        if kb >= 43: return
        for t in range(4):
            u = 4 * kb + t
            if u > 168: break
            ii, p = u // 13, u % 13
            dst = Z[g] + t if kb < 42 else TK[g]
            pkmul(a, dst, TK[g] + 1 + (ii >> 1), ii & 1, P[g] + p)
    for kb in range(3): aread(kb)
    zgen(0, 0); zgen(1, 0)
    for kb in range(nkb):
        a.wait_ds(toks[kb])
        ab = vr(ABUF + 4 * (kb % 4), 4)
        for g in range(2):
            b = vr(Z[g], 4) if kb < 42 else vr(TK[g] + 4 * (kb - 42), 4)
            c_ = "0" if kb == 0 else vr(D[g], 16)
            a.e(f"v_mfma_f32_32x32x16_f16 {vr(D[g],16)}, {ab}, {b}, {c_}")
            if g == 0 and kb + 3 < nkb: aread(kb + 3)
            zgen(g, kb + 1)
        if kb == 21 and mid: mid(a)

def boundary(a, pooled, nops=10):
    a.e(f"s_nop {nops}")
    for g in range(2):
        for mm in range(6):
            a.e(f"v_cvt_pk_f16_f32 v{TK[g]+1+mm}, v{D[g]+2*mm}, v{D[g]+2*mm+1}")
        a.e(f"v_cvt_pk_f16_f32 v{TK[g]+7}, v{D[g]+12}, 0")
        if pooled: a.e(f"v_add_f32 v{V_PL[g]}, v{V_PL[g]}, v{D[g]+13}")
        a.e(f"v_max3_f32 v{V_T0}, abs(v{D[g]}), abs(v{D[g]+1}), abs(v{D[g]+2})")
        a.e(f"v_min_f32 v{V_CHK}, v{V_CHK}, v{V_T0}")

def c_sync(a, k):
    a.wait_all_ds()
    a.e("s_mov_b64 exec, 1")
    a.e(f"ds_add_u32 v{V_CNT}, v{V_ONE} offset:{4*k}")
    a.e("s_mov_b64 exec, -1")
    a.label(f"L_csync{k}")
    a.e(f"ds_read_b32 v{V_ST}, v{V_CNT} offset:{4*k}")
    a.e("s_waitcnt lgkmcnt(0)")
    a.e(f"v_readfirstlane_b32 s40, v{V_ST}")
    a.e("s_cmp_lt_u32 s40, 4")
    a.e(f"s_cbranch_scc1 L_csync{k}")

def dump_regs(a, regs):
    n = len(regs)
    a.e("s_nop 15")
    a.e(f"s_lshl_b32 s40, s{S_WG}, 3")
    a.e(f"s_add_u32 s40, s40, s{S_WAVE}")
    a.e(f"s_mul_i32 s40, s40, {n*256}")
    a.e(f"s_add_u32 s40, s40, 0x400000")
    a.e(f"v_and_b32 v254, 63, v{V_TID}")
    a.e(f"v_lshlrev_b32 v254, 2, v254")
    a.e(f"v_add_u32 v254, s40, v254")
    for i, r in enumerate(regs):
        a.e(f"global_store_dword v254, v{r}, {sr(P_WS,2)}")
        a.e(f"v_add_u32 v254, 256, v254")
    a.e("s_waitcnt vmcnt(0)")
    a.e("s_endpgm")

def stamp(a, slot):
    if DEBUG != "time": return
    a.e(f"s_memtime s[{60+2*slot}:{61+2*slot}]")
    a.e("s_waitcnt lgkmcnt(0)")
    a.ds_done = a.ds
def stamp_loop(a, base_slot):
    if DEBUG != "time": return
    a.e(f"s_memtime s[44:45]")
    a.e("s_waitcnt lgkmcnt(0)")
    a.ds_done = a.ds
    for k in range(3):
        a.e(f"s_cmp_eq_u32 s42, {k}")
        a.e(f"s_cselect_b32 s{60+2*(base_slot+k)}, s44, s{60+2*(base_slot+k)}")
def dump_stamps(a, n):
    if DEBUG != "time": return
    for k in range(n):
        a.e(f"s_sub_u32 s44, s{60+2*k}, s60")
        a.e(f"v_mov_b32 v{200+k}, s44")
    dump_regs(a, [200 + k for k in range(n)])

a = Asm()
a.e(f"s_cmp_ge_u32 s{S_WG}, 256")
a.e("s_cbranch_scc1 L_end")
if DEBUG == "rt":
    a.e("s_memtime s[60:61]")
    a.e("s_memrealtime s[62:63]")
if DEBUG == "time":
    a.e("s_memtime s[60:61]")
    for k in range(1, 20): a.e(f"s_mov_b32 s{60+2*k}, 0")
a.e(f"s_load_dwordx16 s[16:31], s[0:1], 0")
a.e(f"s_load_dwordx4 s[32:35], s[0:1], 64")
a.e(f"s_load_dwordx2 s[36:37], s[0:1], 80")
a.e(f"s_getpc_b64 {sr(P_PC,2)}")
a.label("L_pc")
a.c("code prefetch into L2 + item table")
a.e(f"v_lshlrev_b32 v1, 6, v0")
a.e(f"v_min_u32 v1, L_code_end-L_pc-4, v1")
a.vmem(f"global_load_dword v{V_PF}, v1, {sr(P_PC,2)}")
a.e(f"v_and_b32 v2, 127, v0")
a.e(f"v_lshlrev_b32 v2, 2, v2")
a.e(f"v_add_u32 v2, L_items-L_pc, v2")
tok_item = a.vmem(f"global_load_dword v{V_ITEM}, v2, {sr(P_PC,2)}")
a.e(f"v_lshrrev_b32 v3, 6, v0")
a.e(f"v_and_b32 v{V_LANE}, 63, v0")
a.e(f"v_readfirstlane_b32 s{S_WAVE}, v3")
a.e(f"v_lshlrev_b32 v3, 4, v{V_LANE}")
a.e(f"s_lshl_b32 s40, s{S_WAVE}, 12")
a.e(f"v_add_u32 v11, s40, v3")
a.e(f"s_mov_b32 m0, s40")
a.e(f"s_lshr_b32 s{S_GRP}, s{S_WG}, 2")
a.e(f"s_and_b32 s{S_Q}, s{S_WG}, 3")
a.e(f"s_cmp_ge_u32 s{S_WAVE}, 4")
a.e("s_cbranch_scc1 L_H")

def srd_setup(a):
    a.e("s_waitcnt lgkmcnt(0)")
    for srd, p, n in ((SRD_IDX, P_IDX, 4096*26*4), (SRD_TAB, P_TAB, 32000), (SRD_W, P_W, 210912), (SRD_W1, P_W1, 416*416*2), (SRD_WO, P_WO, 312)):
        a.e(f"s_mov_b32 s{srd}, s{p}")
        a.e(f"s_and_b32 s{srd+1}, s{p+1}, 0xffff")
        a.e(f"s_mov_b32 s{srd+2}, {n}")
        a.e(f"s_mov_b32 s{srd+3}, 0x00020000")
def table_dma(a):
    for k in range(4):
        t = a.vmem(f"buffer_load_dwordx4 v11, {sr(SRD_TAB,4)}, 0 offen offset:{1024*k} lds")
    return t

c = a.fork()
c.c("C-wave")
c.e(f"v_lshlrev_b32 v2, 4, v0")
srd_setup(c)
tok_tab = table_dma(c)
tok_w0 = []
for it in range(9):
    c.e(f"s_mov_b32 s41, {it*4096}")
    tok_w0.append(c.vmem(f"buffer_load_dwordx4 {vr(V_W0+4*it,4)}, v2, {sr(SRD_W,4)}, s41 offen"))
c.e(f"v_add_u32 v{V_ST+30}, {RA}, v2")
c.c("idx LDS address")
c.e(f"v_bfe_u32 v4, v{V_LANE}, 4, 1")
c.e(f"s_lshl_b32 s40, s{S_Q}, 4")
c.e(f"s_lshl_b32 s41, s{S_WAVE}, 2")
c.e(f"s_add_u32 s40, s40, s41")
c.e(f"v_add_u32 v4, s40, v4")
c.e(f"v_mul_u32_u24 v4, 104, v4")
c.e(f"v_bfe_u32 v5, v{V_LANE}, 2, 2")
c.e(f"v_lshl_add_u32 v4, v5, 2, v4")
c.e(f"v_add_u32 v{V_ST+31}, {IDXL}, v4")
c.c("A-operand addresses")
c.e(f"v_and_b32 v8, 31, v{V_LANE}")
c.e(f"v_lshrrev_b32 v9, 5, v{V_LANE}")
c.e(f"v_mov_b32 v10, 26")
c.e(f"v_cmp_gt_u32 vcc, 25, v8")
c.e(f"v_mov_b32 v{V_PL[0]}, 0")
c.e(f"v_mov_b32 v{V_PL[1]}, 0")
c.e(f"v_cndmask_b32 v11, v10, v8, vcc")
c.e(f"v_mov_b32 v10, 25")
c.e(f"v_cmp_eq_u32 vcc, 28, v8")
c.e(f"v_mov_b32 v{V_CHK}, 0x7f800000")
c.e(f"v_mov_b32 v{V_CNT}, {CNT}")
c.e(f"v_cndmask_b32 v11, v11, v10, vcc")
c.e(f"v_mul_u32_u24 v12, {WROW}, v11")
c.e(f"v_add_u32 v12, {RB}, v12")
c.e(f"v_mul_u32_u24 v13, 208, v9")
c.e(f"v_add_u32 v{V_AM}, v12, v13")
c.e(f"v_mul_u32_u24 v13, 80, v9")
c.e(f"v_add_u32 v{V_AT}, v12, v13")
c.e(f"v_add_u32 v{V_AT}, 1248, v{V_AT}")
c.e(f"v_min_u32 v11, 25, v11")
c.e(f"v_mul_u32_u24 v12, {QROW}, v11")
c.e(f"v_mul_u32_u24 v13, 400, v9")
c.e(f"v_add_u32 v{V_AS}, v12, v13")
c.e(f"v_add_u32 v{V_AS}, {QW0}, v{V_AS}")
c.e(f"v_mov_b32 v14, 0x05040100")
c.e(f"v_mov_b32 v10, 0x07060302")
c.e(f"v_cmp_eq_u32 vcc, 0, v9")
c.e(f"v_mov_b32 v{V_ONE}, 1")
c.e(f"v_and_b32 v15, 3, v{V_LANE}")
c.e(f"v_cndmask_b32 v14, v10, v14, vcc")
c.e(f"v_lshlrev_b32 v15, 3, v15")
c.wait_vm(tok_item)
sel_setup(c)
sym_addr_setup(c, 52, RA, 1352, QW0)
c.wait_vm(tok_tab)
stamp(c, 1)
c.e("s_barrier")
stamp(c, 2)
for g in range(2):
    for t in range(7):
        tk_i = c.dsop(f"ds_read_b32 v{V_IDX+7*g+t}, v{V_ST+31} offset:{208*g+16*t}")
c.c("W_0 -> f16, linear in RA")
for it in range(9):
    c.wait_vm(tok_w0[it])
    for k in range(4):
        r = V_W0 + 4 * it + k
        cvt2(c, r, r, V_ST + 1 + 2 * (k % 2), V_ST + 2 + 2 * (k % 2))
    c.dsop(f"ds_write_b128 v{V_ST+30}, {vr(V_W0+4*it,4)} offset:{it*4096}")
    if it == 0:
        c.wait_ds(tk_i)
        for k in range(14):
            c.e(f"v_lshl_add_u32 v{V_IDX+k}, v{V_IDX+k}, 5, v15")
        for g in range(2):
            for t in range(7):
                c.dsop(f"ds_read_b64_tr_b16 {vr(P[g]+2*t,2)}, v{V_IDX+7*g+t}")
c_sync(c, 0)
stamp(c, 3)
fill = []
class L_:
    def e(self, s): fill.append(s)
fl = L_()
for g in range(2):
    for p in range(13):
        cvt2(fl, P[g] + p, P[g] + p, 8 + 2 * (p % 2), 9 + 2 * (p % 2))
    fl.e(f"v_mov_b32 v{P[g]+13}, 0x3c003c00")
    for m in range(7):
        fl.e(f"v_perm_b32 v{XA[g]+m}, v{P[g]+2*m+1}, v{P[g]+2*m}, v14")
    fl.e(f"v_mov_b32 v{XA[g]+7}, 0")
sym_run(c, 52, 1352, filler=fill)
c_sync(c, 1)
stamp(c, 4)
stage_S(c, D, False)
if DEBUG == "s1":
    dump_regs(c, list(range(D[0], D[0] + 16)) + list(range(D[1], D[1] + 16)))
boundary(c, False)
c.e(f"v_add_u32 v{V_AS}, {(QW1 - QW0) & 0xffffffff}, v{V_AS}")
c.c("publish addressing (used by wave 0 in layer 3)")
c.e(f"v_lshlrev_b32 v{V_ST}, 2, v{V_LANE}")
c.e(f"v_add_u32 v{V_ST+1}, {PART}, v{V_ST}")
c.e(f"s_lshl_b32 s40, s{S_WG}, 8")
c.e(f"v_add_u32 v{V_ST}, s40, v{V_ST}")
c.e(f"s_lshr_b32 s40, s{S_GRP}, 1")
c.e(f"s_lshl_b32 s40, s40, 2")
c.e(f"s_add_u32 s40, s40, 128")
c.e(f"v_mov_b32 v{V_ST+2}, s40")
c.e(f"s_and_b32 s40, s{S_GRP}, 1")
c.e(f"s_lshl_b32 s40, s40, 4")
c.e(f"s_lshl_b32 s40, 0x1111, s40")
c.e(f"v_mov_b32 v{V_ST+3}, s40")
c.e(f"s_lshl_b32 s47, s{S_WAVE}, 4")
c.wait_all_ds()
stamp(c, 5)
c.e("s_barrier")
c.e("s_mov_b32 s42, 0")
c.e(f"s_mov_b32 s43, {(RA - RB) & 0xffffffff}")
c.label("L_layer")
c.e("s_add_u32 s46, s47, s42")
c.e("s_cmp_lg_u32 s46, 2")
c.e("s_cbranch_scc1 L_nopub")
c.e(f"ds_read2st64_b32 {vr(V_ST+4,2)}, v{V_ST+1} offset0:0 offset1:1")
c.e(f"ds_read2st64_b32 {vr(V_ST+6,2)}, v{V_ST+1} offset0:2 offset1:3")
c.e("s_waitcnt lgkmcnt(0)")
c.e(f"v_add_f32 v{V_ST+4}, v{V_ST+4}, v{V_ST+5}")
c.e(f"v_add_f32 v{V_ST+6}, v{V_ST+6}, v{V_ST+7}")
c.e(f"v_add_f32 v{V_ST+4}, v{V_ST+4}, v{V_ST+6}")
c.e(f"global_store_dword v{V_ST}, v{V_ST+4}, {sr(P_WS,2)} sc1")
c.label("L_nopub")
stamp_loop(c, 6)
def mid(a):
    a.e("s_barrier")
    a.e("s_cmp_lg_u32 s46, 2")
    a.e("s_cbranch_scc1 L_noatom")
    a.e("s_waitcnt vmcnt(0)")
    a.e("s_mov_b64 exec, 1")
    a.e(f"global_atomic_add v{V_ST+2}, v{V_ST+3}, {sr(P_DBG,2)} sc1")
    a.e("s_mov_b64 exec, -1")
    a.label("L_noatom")
stage_L(c, mid)
stamp_loop(c, 9)
if DEBUG in ("l2", "l3", "l4"):
    c.e(f"s_cmp_lg_u32 s42, {int(DEBUG[1]) - 2}")
    c.e("s_cbranch_scc1 L_nodump")
    dump_regs(c, list(range(D[0], D[0] + 16)) + list(range(D[1], D[1] + 16)))
    c.label("L_nodump")
c.e("s_cmp_eq_u32 s42, 2")
c.e("s_cbranch_scc1 L_layers_done")
boundary(c, True, nops=8)
c.e(f"v_add_u32 v{V_AM}, s43, v{V_AM}")
c.e(f"v_add_u32 v{V_AT}, s43, v{V_AT}")
c.e("s_sub_u32 s43, 0, s43")
c.e("s_add_u32 s42, s42, 1")
c.e("s_barrier")
c.e("s_branch L_layer")
c.label("L_layers_done")
c.e("s_barrier")
stamp(c, 12)
stage_S(c, E, True)
stamp(c, 13)
if DEBUG == "s2":
    dump_regs(c, list(range(E[0], E[0] + 16)) + list(range(E[1], E[1] + 16)))
c.c("final: 0.5*(pooled) + 2^-8 * u4.x4, reduce over d")
for g in range(2):
    c.e(f"v_add_f32 v{V_PL[g]}, v{V_PL[g]}, v{D[g]+13}")
    c.e(f"v_mul_f32 v{V_PL[g]}, 0x43000000, v{V_PL[g]}")
c.e(f"v_bfe_u32 v10, v{V_LANE}, 4, 1")
c.e(f"v_lshrrev_b32 v11, 5, v{V_LANE}")
c.e(f"v_lshl_add_u32 v10, v10, 1, v11")
c.e(f"s_lshl_b32 s40, s{S_WAVE}, 5")
c.e(f"s_add_u32 s40, s40, {CINP}")
c.e(f"v_lshl_add_u32 v10, v10, 2, s40")
c.e("s_nop 3")
for r in range(13):
    for g in range(2):
        c.e(f"v_fmac_f32 v{V_PL[g]}, v{E[g]+r}, v{D[g]+r}")
for sh in (1, 2, 4, 8):
    c.e("s_nop 0")
    for g in range(2):
        c.e(f"v_add_f32_dpp v{V_PL[g]}, v{V_PL[g]}, v{V_PL[g]} row_shr:{sh} row_mask:0xf bank_mask:0xf bound_ctrl:0")
for g in range(2):
    c.e(f"v_mul_f32 v{V_PL[g]}, 0x3b800000, v{V_PL[g]}")
c.e("s_mov_b32 exec_lo, 0x80008000")
c.e("s_mov_b32 exec_hi, 0x80008000")
c.e(f"ds_write_b32 v10, v{V_PL[0]}")
c.e(f"ds_write_b32 v10, v{V_PL[1]} offset:16")
c.e("s_mov_b64 exec, -1")
c.wait_all_ds()
c.e("s_barrier")
stamp(c, 14)
dump_stamps(c, 16)
c.e("s_endpgm")

h = a.fork()
h.label("L_H")
H_WL = 16
H_GM, H_GM8, H_LM, H_GT, H_LT, H_LT4, H_MSK = 2, 3, 4, 5, 6, 7, 8
H_PW, H_PWA = 9, 10
H_Z4 = 12
H_T = 56
HD = [64, 80]
H_XA = 96
H_W2 = 148
H_AB = 164
H_BB = 176
H_DV, H_TR = 248, 249
H_SM = 240
H_W3B = 250
h.e(f"s_sub_u32 s{S_HW}, s{S_WAVE}, 4")
h.e(f"s_mul_i32 s{S_DT}, s{S_Q}, 3")
h.e(f"s_add_u32 s{S_DT}, s{S_DT}, s{S_HW}")
h.e(f"s_cmp_eq_u32 s{S_Q}, 0")
h.e(f"s_cselect_b32 s40, 12, 13")
h.e(f"s_cmp_eq_u32 s{S_HW}, 3")
h.e(f"s_cselect_b32 s{S_DT}, s40, s{S_DT}")
h.e(f"s_mul_i32 s{S_RING}, s{S_HW}, {RING_W}")
h.e(f"s_add_u32 s{S_RING}, s{S_RING}, {RING}")
h.c("idx DMA: 2 KB per wave")
h.e(f"s_mul_i32 s40, s{S_GRP}, 6656")
h.e(f"s_lshl_b32 s41, s{S_HW}, 11")
h.e(f"s_add_u32 s40, s40, s41")
h.e(f"v_add_u32 v{H_T}, s40, v3")
h.e(f"s_add_u32 s44, s41, {IDXL}")
h.c("w1 DMA voffset: (l>>2)*832 + (l&3)*16 + dt*64")
h.e(f"v_lshrrev_b32 v{H_T+1}, 2, v{V_LANE}")
h.e(f"v_mul_u32_u24 v{H_DV}, 832, v{H_T+1}")
h.e(f"v_and_b32 v{H_T+2}, 3, v{V_LANE}")
h.e(f"v_lshl_add_u32 v{H_DV}, v{H_T+2}, 4, v{H_DV}")
h.e(f"s_lshl_b32 s40, s{S_DT}, 6")
h.e(f"v_add_u32 v{H_DV}, s40, v{H_DV}")
srd_setup(h)
tok_tab_h = table_dma(h)
h.e(f"s_mov_b32 m0, s44")
h.e("s_nop 0")
h.vmem(f"buffer_load_dwordx4 v{H_T}, {sr(SRD_IDX,4)}, 0 offen lds")
tok_hidx = h.vmem(f"buffer_load_dwordx4 v{H_T}, {sr(SRD_IDX,4)}, 0 offen offset:1024 lds")
tok_ring = {}
def ring_dma(a, j):
    a.e(f"s_add_u32 m0, s{S_RING}, {(j % RING_SLOTS) * 1024}")
    a.e(f"s_mov_b32 s41, {j*16*832}")
    tok_ring[j] = a.vmem(f"buffer_load_dwordx4 v{H_DV}, {sr(SRD_W1,4)}, s41 offen lds")
h.c("small loads")
h.e(f"v_lshlrev_b32 v{H_T}, 2, v{V_LANE}")
h.e(f"v_add_u32 v{H_T+1}, L_pwtab-L_pc, v{H_T}")
tok_pwt = h.vmem(f"global_load_dword v{H_PWA}, v{H_T+1}, {sr(P_PC,2)}")
tok_w4 = h.vmem(f"buffer_load_dword v{H_SM+2}, v{H_T}, {sr(SRD_WO,4)}, 0 offen offset:208")
h.e(f"v_and_b32 v{H_T}, 31, v{V_LANE}")
h.e(f"s_min_u32 s40, s{S_DT}, 12")
h.e(f"s_lshl_b32 s40, s40, 6")
h.e(f"v_lshl_add_u32 v{H_T}, v{H_T}, 1, s40")
tok_b1 = h.vmem(f"global_load_ushort v{H_SM}, v{H_T}, {sr(P_B1,2)}")
tok_w2 = h.vmem(f"global_load_ushort v{H_SM+1}, v{H_T}, {sr(P_W2,2)}")
h.e(f"v_lshrrev_b32 v{H_T+1}, 4, v{V_LANE}")
h.e(f"v_lshlrev_b32 v{H_T+1}, 4, v{H_T+1}")
tok_w5 = h.vmem(f"buffer_load_dwordx4 {vr(H_SM+4,4)}, v{H_T+1}, {sr(SRD_WO,4)}, 0 offen offset:260")
h.e(f"v_bfe_u32 v{H_T+1}, v0, 4, 4")
h.e(f"v_add_u32 v{H_T+2}, 16, v{H_T+1}")
h.e(f"v_min_u32 v{H_T+2}, 25, v{H_T+2}")
h.e(f"v_lshlrev_b32 v{H_T+1}, 1, v{H_T+1}")
h.e(f"v_lshlrev_b32 v{H_T+2}, 1, v{H_T+2}")
h.vmem(f"global_load_ushort v{H_SM+3}, v{H_T+1}, {sr(P_WO,2)} offset:156")
tok_w3 = h.vmem(f"global_load_ushort v{H_W3B}, v{H_T+2}, {sr(P_WO,2)} offset:156")
for j in range(RING_SLOTS): ring_dma(h, j)
h.c("conversion addressing")
h.e(f"v_and_b32 v{H_T}, 255, v0")
h.e(f"v_min_u32 v{H_T+1}, 233, v{H_T}")
h.e(f"v_mul_u32_u24 v{H_T+2}, 841, v{H_T+1}")
h.e(f"v_lshrrev_b32 v{H_T+2}, 16, v{H_T+2}")
h.e(f"v_mul_u32_u24 v{H_T+3}, 78, v{H_T+2}")
h.e(f"v_sub_u32 v{H_T+3}, v{H_T+1}, v{H_T+3}")
h.e(f"v_mul_u32_u24 v{H_GM}, 1352, v{H_T+2}")
h.e(f"v_lshl_add_u32 v{H_GM}, v{H_T+3}, 4, v{H_GM}")
h.e(f"v_mul_u32_u24 v{H_LM}, {WROW}, v{H_T+2}")
h.e(f"v_lshl_add_u32 v{H_LM}, v{H_T+3}, 4, v{H_LM}")
h.e(f"v_mov_b32 v{H_T+4}, 0x40000000")
h.e(f"v_cmp_eq_u32 vcc, 2, v{H_T+2}")
h.e(f"v_lshrrev_b32 v{H_T+1}, 3, v{H_T}")
h.e(f"v_min_u32 v{H_T+1}, 26, v{H_T+1}")
h.e(f"v_cndmask_b32 v{H_GM8}, v{H_GM}, v{H_T+4}, vcc")
h.e(f"v_bfe_u32 v{H_T+2}, v{H_T}, 2, 1")
h.e(f"v_and_b32 v{H_T+3}, 3, v{H_T}")
h.e(f"v_mul_u32_u24 v{H_GT}, 1352, v{H_T+1}")
h.e(f"v_mul_u32_u24 v{H_T+5}, 52, v{H_T+2}")
h.e(f"v_add_u32 v{H_GT}, v{H_GT}, v{H_T+5}")
h.e(f"v_lshl_add_u32 v{H_GT}, v{H_T+3}, 4, v{H_GT}")
h.e(f"v_add_u32 v{H_GT}, 1248, v{H_GT}")
h.e(f"v_cmp_eq_u32 vcc, 26, v{H_T+1}")
h.e(f"v_mul_u32_u24 v{H_LT4}, {WROW}, v{H_T+1}")
h.e(f"v_mul_u32_u24 v{H_T+5}, 80, v{H_T+2}")
h.e(f"v_cndmask_b32 v{H_GT}, v{H_GT}, v{H_T+4}, vcc")
h.e(f"v_add_u32 v{H_LT4}, v{H_LT4}, v{H_T+5}")
h.e(f"v_add_u32 v{H_LT4}, 1248, v{H_LT4}")
h.e(f"v_lshl_add_u32 v{H_LT}, v{H_T+3}, 4, v{H_LT4}")
h.e(f"v_add_u32 v{H_LT4}, 64, v{H_LT4}")
h.e(f"v_cmp_eq_u32 vcc, 3, v{H_T+3}")
h.e(f"v_mov_b32 v{H_T+5}, -1")
for k in range(4): h.e(f"v_mov_b32 v{H_Z4+k}, 0")
h.e(f"v_cndmask_b32 v{H_MSK}, v{H_T+5}, v{H_Z4}, vcc")

def wl_issue1(a, l, it):
    if it < 9:
        a.e(f"s_mov_b32 s41, {l*35152 + it*3*1352}")
        return a.vmem(f"buffer_load_dwordx4 {vr(H_WL+4*it,4)}, v{H_GM8 if it == 8 else H_GM}, {sr(SRD_W,4)}, s41 offen")
    a.e(f"s_mov_b32 s41, {l*35152}")
    return a.vmem(f"buffer_load_dwordx4 {vr(H_WL+36,4)}, v{H_GT}, {sr(SRD_W,4)}, s41 offen")
def wl_issue(a, l):
    return [wl_issue1(a, l, it) for it in range(10)]
def wl_convert(a, toks, base, l):
    a.e(f"v_add_u32 v{H_T+6}, {base}, v{H_LM}")
    a.e(f"v_add_u32 v{H_T+7}, {base}, v{H_LT}")
    for it in range(10):
        if toks: a.wait_vm(toks[it])
        for k in range(4):
            r = H_WL + 4 * it + k
            cvt2(a, r, r, H_T + 2 * (k % 2), H_T + 1 + 2 * (k % 2))
            if it == 9 and k > 0: a.e(f"v_and_b32 v{r}, v{H_MSK}, v{r}")
        if it < 9:
            a.dsop(f"ds_write_b128 v{H_T+6}, {vr(H_WL+4*it,4)} offset:{it*3*WROW}")
        else:
            a.dsop(f"ds_write_b128 v{H_T+7}, {vr(H_WL+36,4)}")
            a.e(f"v_add_u32 v{H_T+7}, {base}, v{H_LT4}")
            a.dsop(f"ds_write_b128 v{H_T+7}, {vr(H_Z4,4)}")
    lab = f"L_pw{l}"
    a.e(f"s_cmp_lg_u32 s{S_WAVE}, 7")
    a.e(f"s_cbranch_scc1 {lab}")
    m = ((1 << 14) - 1) << (14 * (l - 1))
    a.e(f"v_add_u32 v{H_T+7}, {base + 26*WROW + 1248}, v{H_PWA}")
    a.e(f"s_mov_b32 exec_lo, {m & 0xffffffff:#x}")
    a.e(f"s_mov_b32 exec_hi, {m >> 32:#x}")
    a.e(f"ds_write_b32 v{H_T+7}, v{H_PW}")
    a.e(f"s_mov_b64 exec, -1")
    a.label(lab)
    a.wait_all_ds()

h.c("DNN tr-read address, idx LDS address")
h.e(f"v_lshrrev_b32 v{H_T}, 5, v{V_LANE}")
h.e(f"v_bfe_u32 v{H_T+1}, v{V_LANE}, 4, 1")
h.e(f"v_bfe_u32 v{H_T+2}, v{V_LANE}, 2, 2")
h.e(f"v_and_b32 v{H_T+3}, 3, v{V_LANE}")
h.e(f"v_lshl_add_u32 v{H_T+4}, v{H_T}, 3, v{H_T+2}")
h.e(f"v_lshlrev_b32 v{H_T+5}, 5, v{H_T+1}")
h.e(f"v_lshl_add_u32 v{H_T+5}, v{H_T+3}, 3, v{H_T+5}")
h.e(f"v_lshl_add_u32 v{H_TR}, v{H_T+4}, 6, v{H_T+5}")
h.e(f"v_add_u32 v{H_TR}, s{S_RING}, v{H_TR}")
h.e(f"v_lshlrev_b32 v{H_T+6}, 4, v{H_T}")
h.e(f"v_and_b32 v{H_T+7}, 31, v{V_LANE}")
h.e(f"v_mul_u32_u24 v{H_T+7}, 104, v{H_T+7}")
h.e(f"v_add_u32 v{H_T+7}, {IDXL}, v{H_T+7}")
h.c("zero the sync counters and UT (wave 4)")
h.e(f"s_cmp_lg_u32 s{S_WAVE}, 4")
h.e(f"s_cbranch_scc1 L_noinit")
h.e(f"v_lshlrev_b32 v{H_T}, 4, v{V_LANE}")
h.e(f"v_add_u32 v{H_T}, {UT}, v{H_T}")
h.e(f"ds_write_b128 v{H_T}, {vr(H_Z4,4)}")
h.e(f"ds_write_b128 v{H_T}, {vr(H_Z4,4)} offset:1024")
h.e(f"ds_write_b128 v{H_T}, {vr(H_Z4,4)} offset:1536")
h.e(f"v_mov_b32 v{H_T}, {CNT}")
h.e(f"ds_write_b128 v{H_T}, {vr(H_Z4,4)}")
h.label("L_noinit")
h.wait_vm(tok_hidx)
h.wait_all_ds()
stamp(h, 1)
h.e("s_barrier")
stamp(h, 2)
h.e(f"s_cmp_gt_u32 s{S_DT}, 12")
h.e("s_cbranch_scc1 L_nodnn1")
hsave = (h.vm, h.ds, h.vm_done, h.ds_done)
for rt in range(2):
    for k in range(6):
        h.dsop(f"ds_read_b128 {vr(H_XA+26*rt+4*k,4)}, v{H_T+7} offset:{3328*rt+16*k}")
    tk_hi = h.dsop(f"ds_read_b64 {vr(H_XA+26*rt+24,2)}, v{H_T+7} offset:{3328*rt+96}")
h.c("bias / w2 table")
h.wait_vm(tok_w2)
h.e(f"v_cmp_gt_u32 vcc, 32, v{V_LANE}")
h.e(f"s_lshl_b32 s40, s{S_HW}, 8")
h.e(f"s_add_u32 s40, s40, {BW}")
h.e(f"v_cndmask_b32 v{H_SM}, v{H_SM+1}, v{H_SM}, vcc")
h.e(f"v_lshlrev_b32 v{H_SM}, 16, v{H_SM}")
h.e(f"v_lshl_add_u32 v{H_T}, v{V_LANE}, 2, s40")
h.dsop(f"ds_write_b32 v{H_T}, v{H_SM}")
h.e(f"v_add_u32 v{H_T}, s40, v{H_T+6}")
h.wait_ds(tk_hi)
for g4 in range(4):
    h.dsop(f"ds_read_b128 {vr(HD[0]+4*g4,4)}, v{H_T} offset:{32*g4}")
    h.dsop(f"ds_read_b128 {vr(HD[1]+4*g4,4)}, v{H_T} offset:{32*g4}")
    h.dsop(f"ds_read_b128 {vr(H_W2+4*g4,4)}, v{H_T} offset:{128+32*g4}")
def xaddr(j):
    h.e(f"v_lshl_add_u32 v{H_XA+j}, v{H_XA+j}, 5, v{H_T+6}")
    h.e(f"v_lshl_add_u32 v{H_XA+26+j}, v{H_XA+26+j}, 5, v{H_T+6}")
h.c("DNN K loop")
dtok = {}
def dnn_reads(j):
    xaddr(j)
    h.wait_vm(tok_ring[j])
    ab = H_AB + 4 * (j % 3)
    so = (j % RING_SLOTS) * 1024
    h.dsop(f"ds_read_b64_tr_b16 {vr(ab,2)}, v{H_TR} offset:{so}")
    h.dsop(f"ds_read_b64_tr_b16 {vr(ab+2,2)}, v{H_TR} offset:{so+256}")
    bb = H_BB + 8 * (j % 3)
    h.dsop(f"ds_read_b128 {vr(bb,4)}, v{H_XA+j}")
    dtok[j] = h.dsop(f"ds_read_b128 {vr(bb+4,4)}, v{H_XA+26+j}")
dnn_reads(0); dnn_reads(1)
for j in range(26):
    if j + 2 < 26: dnn_reads(j + 2)
    h.wait_ds(dtok[j])
    ab = H_AB + 4 * (j % 3); bb = H_BB + 8 * (j % 3)
    h.e(f"v_mfma_f32_32x32x16_bf16 {vr(HD[0],16)}, {vr(ab,4)}, {vr(bb,4)}, {vr(HD[0],16)}")
    if j + RING_SLOTS < 26: ring_dma(h, j + RING_SLOTS)
    h.e(f"v_mfma_f32_32x32x16_bf16 {vr(HD[1],16)}, {vr(ab,4)}, {vr(bb+4,4)}, {vr(HD[1],16)}")
    if 12 <= j < 22: wl_issue1(h, 1, j - 12)
h.e("s_branch L_dnn1done")
h.label("L_nodnn1")
h.e("s_waitcnt vmcnt(0)")
wl_issue(h, 1)
h.label("L_dnn1done")
stamp(h, 3)
h.c("pooled weights")
h.e(f"v_and_b32 v{H_T}, 0xff, v{H_PWA}")
h.e(f"v_lshlrev_b32 v{H_T}, 2, v{H_T}")
h.e(f"global_load_dword v{H_PW}, v{H_T}, {sr(P_WO,2)}")
h.c("w4 row of UT, A_t fragments for the U gemm")
h.e(f"s_mov_b32 s40, {USCALE_BITS:#x}")
h.e(f"v_pk_add_u16 v{H_SM+2}, v{H_SM+2}, s40")
h.e(f"v_lshlrev_b32 v{H_T}, 2, v{V_LANE}")
h.e(f"v_add_u32 v{H_T}, {UT + 26*UT_ROW}, v{H_T}")
h.e(f"s_mov_b64 exec, 0x1fff")
h.dsop(f"ds_write_b32 v{H_T}, v{H_SM+2}")
h.e(f"s_mov_b64 exec, -1")
H_UA = H_BB
h.e(f"v_and_b32 v{H_T}, 15, v{V_LANE}")
for k in range(4): h.e(f"v_pk_add_u16 v{H_SM+4+k}, v{H_SM+4+k}, s40")
for t in range(4):
    h.e(f"v_cmp_eq_u32 vcc, {4*t}, v{H_T}")
    h.e("s_nop 1")
    for k in range(4):
        h.e(f"v_cndmask_b32 v{H_UA+4*t+k}, v{H_Z4}, v{H_SM+4+k}, vcc")
h.wait_all_vm()
h.e(f"v_lshlrev_b32 v{H_T}, 16, v{H_PW}")
h.e(f"v_and_b32 v{H_T+1}, 0xffff0000, v{H_PW}")
h.e(f"v_bfe_u32 v{H_T+2}, v{H_PWA}, 16, 2")
h.e(f"v_cmp_eq_u32 vcc, 2, v{H_T+2}")
h.e("s_nop 1")
h.e(f"v_cndmask_b32 v{H_T}, v{H_T}, v{H_T+1}, vcc")
h.e(f"v_cmp_eq_u32 vcc, 0, v{H_T+2}")
h.e("s_nop 1")
h.e(f"v_cndmask_b32 v{H_T+1}, v{H_Z4}, v{H_T+1}, vcc")
h.e(f"v_cvt_pk_f16_f32 v{H_PW}, v{H_T}, v{H_T+1}")
h.e(f"v_bfe_u32 v{H_PWA}, v{H_PWA}, 8, 8")
wl_convert(h, None, RB, 1)
tw2 = wl_issue(h, 2)
stamp(h, 5)
h.e("s_barrier")
stamp(h, 6)
h.c("stage W_5 -> X, W_4 -> Y (linear)")
h.e(f"s_lshl_b32 s40, s{S_HW}, 10")
h.e(f"v_lshlrev_b32 v{H_T}, 4, v{V_LANE}")
h.e(f"v_add_u32 v{H_T}, s40, v{H_T}")
for l, base in ((5, XREG), (4, YREG)):
    for k in range(9):
        h.e(f"s_add_u32 m0, s40, {base + 4096*k}")
        h.e(f"s_mov_b32 s41, {l*35152 + 4096*k}")
        tok_stg = h.vmem(f"buffer_load_dwordx4 v{H_T}, {sr(SRD_W,4)}, s41 offen lds")

K0 = -2.0 * 0.7978845608028654 * 1.4426950408889634
import struct
def f2u(x): return struct.unpack("<I", struct.pack("<f", x))[0]
G = V_ST
def gelu_part(a, rt, tag):
    a.e(f"s_cmp_gt_u32 s{S_DT}, 12")
    a.e(f"s_cbranch_scc1 L_nog{tag}")
    a.e(f"s_mov_b32 s40, {f2u(K0*0.044715):#x}")
    a.e(f"v_mov_b32 v{G+7}, {f2u(K0):#x}")
    for r0 in range(0, 16, 4):
        xs = [HD[rt] + r0 + k for k in range(4)]
        for k in range(4): a.e(f"v_mul_f32 v{G+k}, v{xs[k]}, v{xs[k]}")
        for k in range(4): a.e(f"v_fma_f32 v{G+k}, v{G+k}, s40, v{G+7}")
        for k in range(4): a.e(f"v_mul_f32 v{G+k}, v{xs[k]}, v{G+k}")
        for k in range(4): a.e(f"v_exp_f32 v{G+k}, v{G+k}")
        for k in range(4): a.e(f"v_add_f32 v{G+k}, 1.0, v{G+k}")
        for k in range(4): a.e(f"v_rcp_f32 v{G+k}, v{G+k}")
        for k in range(4): a.e(f"v_mul_f32 v{xs[k]}, v{xs[k]}, v{H_W2+r0+k}")
        for k in range(4): a.e(f"v_fmac_f32 v{G+8+rt}, v{xs[k]}, v{G+k}")
    a.label(f"L_nog{tag}")
h.e(f"v_mov_b32 v{G+8}, 0")
h.e(f"v_mov_b32 v{G+9}, 0")
gelu_part(h, 0, "a")
h.c("U / Q gemm addressing")
H_U0, H_U1, H_Q0, H_Q1, H_Q2 = 96, 97, 98, 99, 100
h.e(f"v_bfe_u32 v{H_T}, v{V_LANE}, 2, 2")
h.e(f"v_and_b32 v{H_T+1}, 3, v{V_LANE}")
h.e(f"v_lshlrev_b32 v{H_T+1}, 3, v{H_T+1}")
h.e(f"s_lshl_b32 s40, s{S_HW}, 7")
h.e(f"v_add_u32 v{H_T+1}, s40, v{H_T+1}")
h.e(f"v_lshrrev_b32 v{H_T+2}, 4, v{V_LANE}")
h.e(f"v_lshl_add_u32 v{H_T+2}, v{H_T+2}, 3, v{H_T}")
h.e(f"v_min_u32 v{H_T+3}, 25, v{H_T+2}")
h.e(f"v_mul_u32_u24 v{H_T+3}, 1352, v{H_T+3}")
h.e(f"v_add3_u32 v{H_U0}, v{H_T+3}, v{H_T+1}, {XREG}")
h.e(f"v_add_u32 v{H_T+2}, 4, v{H_T+2}")
h.e(f"v_min_u32 v{H_T+3}, 25, v{H_T+2}")
h.e(f"v_mul_u32_u24 v{H_T+3}, 1352, v{H_T+3}")
h.e(f"v_add3_u32 v{H_U1}, v{H_T+3}, v{H_T+1}, {XREG}")
h.e(f"v_bfe_u32 v{H_T+2}, v{V_LANE}, 4, 1")
h.e(f"v_lshl_add_u32 v{H_T+1}, v{H_T+2}, 5, v{H_T+1}")
h.e(f"v_add_u32 v{H_T+1}, {YREG}, v{H_T+1}")
h.e(f"v_lshrrev_b32 v{H_T+2}, 5, v{V_LANE}")
h.e(f"v_lshl_add_u32 v{H_T+2}, v{H_T+2}, 3, v{H_T}")
h.e(f"v_mul_u32_u24 v{H_T+3}, 1352, v{H_T+2}")
h.e(f"v_add_u32 v{H_Q0}, v{H_T+3}, v{H_T+1}")
for reg, add in ((H_Q1, 16), (H_Q2, 20)):
    h.e(f"v_add_u32 v{H_T+3}, {add}, v{H_T+2}")
    h.e(f"v_min_u32 v{H_T+3}, 25, v{H_T+3}")
    h.e(f"v_mul_u32_u24 v{H_T+3}, 1352, v{H_T+3}")
    h.e(f"v_add_u32 v{reg}, v{H_T+3}, v{H_T+1}")
h.wait_vm(tok_stg)
stamp(h, 7)
h.e("s_barrier")
H_UB = 104
H_UD = 120
def u_reads(a, i):
    for t in range(4):
        a.dsop(f"ds_read_b64_tr_b16 {vr(H_UB+4*t,2)}, v{H_U0} offset:{512*i+32*t}")
        a.dsop(f"ds_read_b64_tr_b16 {vr(H_UB+4*t+2,2)}, v{H_U1} offset:{512*i+32*t}")
def u_step(a, i):
    u_reads(a, i)
    a.e(f"s_lshl_b32 s40, s{S_HW}, 6")
    a.e(f"s_add_u32 s40, s40, {256*i}")
    a.e(f"v_add_u32 v{H_T}, s40, v{V_LANE}")
    a.e(f"v_mul_u32_u24 v{H_T+1}, 2521, v{H_T}")
    a.e(f"v_lshrrev_b32 v{H_T+1}, 16, v{H_T+1}")
    a.e(f"v_mul_u32_u24 v{H_T+2}, 26, v{H_T+1}")
    a.e(f"v_sub_u32 v{H_T+2}, v{H_T}, v{H_T+2}")
    a.e(f"v_mul_u32_u24 v{H_T+2}, {UT_ROW}, v{H_T+2}")
    a.e(f"v_lshl_add_u32 v{H_T+2}, v{H_T+1}, 1, v{H_T+2}")
    a.e(f"v_mov_b32 v{H_T+3}, {31*UT_ROW}")
    a.e(f"v_cmp_gt_u32 vcc, 676, v{H_T}")
    a.wait_all_ds()
    for t in range(4):
        c_ = "0" if t == 0 else vr(H_UD, 4)
        a.e(f"v_mfma_f32_16x16x32_bf16 {vr(H_UD,4)}, {vr(H_UA+4*t,4)}, {vr(H_UB+4*t,4)}, {c_}")
    a.e(f"v_cndmask_b32 v{H_T+2}, v{H_T+3}, v{H_T+2}, vcc")
    a.e(f"v_add_u32 v{H_T+2}, {UT}, v{H_T+2}")
    a.e("s_nop 6")
    a.e(f"v_cvt_pk_bf16_f32 v{H_T+3}, v{H_UD}, 0")
    a.dsop(f"ds_write_b16 v{H_T+2}, v{H_T+3}")
wl_convert(h, tw2, RA, 2)
tw3 = wl_issue(h, 3)
for i in range(3): u_step(h, i)
h.wait_all_ds()
stamp(h, 8)
h.e("s_barrier")
stamp(h, 9)
h.c("Q gemm")
H_QA = 124
H_QB = 104
H_QD = [164, 180]
H_QW = 101
h.e(f"v_and_b32 v{H_T}, 31, v{V_LANE}")
h.e(f"v_lshrrev_b32 v{H_T+1}, 5, v{V_LANE}")
h.e(f"v_mul_u32_u24 v{H_T+2}, {UT_ROW}, v{H_T}")
h.e(f"v_lshl_add_u32 v{H_T+2}, v{H_T+1}, 4, v{H_T+2}")
h.e(f"v_add_u32 v{H_T+2}, {UT}, v{H_T+2}")
h.dsop(f"ds_read_b128 {vr(H_QA,4)}, v{H_T+2}")
h.dsop(f"ds_read_b128 {vr(H_QA+4,4)}, v{H_T+2} offset:32")
h.e(f"s_lshl_b32 s40, s{S_HW}, 6")
h.e(f"v_add_u32 v{H_T}, s40, v{H_T}")
h.e(f"v_mul_u32_u24 v{H_QW}, {QS_ROW}, v{H_T}")
h.e(f"v_lshl_add_u32 v{H_QW}, v{H_T+1}, 3, v{H_QW}")
def q_reads(a, i):
    for ct in range(2):
        o = 512 * i + 64 * ct
        b = H_QB + 8 * ct
        a.dsop(f"ds_read_b64_tr_b16 {vr(b,2)}, v{H_Q0} offset:{o}")
        a.dsop(f"ds_read_b64_tr_b16 {vr(b+2,2)}, v{H_Q0} offset:{o+4*1352}")
        a.dsop(f"ds_read_b64_tr_b16 {vr(b+4,2)}, v{H_Q1} offset:{o}")
        a.dsop(f"ds_read_b64_tr_b16 {vr(b+6,2)}, v{H_Q2} offset:{o}")
def q_mma(a):
    a.wait_all_ds()
    for ct in range(2):
        a.e(f"v_mfma_f32_32x32x16_bf16 {vr(H_QD[ct],16)}, {vr(H_QA,4)}, {vr(H_QB+8*ct,4)}, 0")
        a.e(f"v_mfma_f32_32x32x16_bf16 {vr(H_QD[ct],16)}, {vr(H_QA+4,4)}, {vr(H_QB+8*ct+4,4)}, {vr(H_QD[ct],16)}")
def q_store(a, i):
    for ct in range(2):
        for k in range(8):
            a.e(f"v_cvt_pk_f16_f32 v{H_QD[ct]+k}, v{H_QD[ct]+2*k}, v{H_QD[ct]+2*k+1}")
        o = QS + (256 * i + 32 * ct) * QS_ROW
        for g4 in range(3):
            a.dsop(f"ds_write_b64 v{H_QW}, {vr(H_QD[ct]+2*g4,2)} offset:{o+16*g4}")
        a.e("s_mov_b32 exec_hi, 0")
        a.dsop(f"ds_write_b64 v{H_QW}, {vr(H_QD[ct]+6,2)} offset:{o+48}")
        a.e("s_mov_b32 exec_hi, -1")
q_reads(h, 0); q_mma(h)
q_reads(h, 1); h.e("s_nop 4"); q_store(h, 0); q_mma(h)
h.e(f"s_cmp_eq_u32 s{S_HW}, 3")
h.e("s_cbranch_scc1 L_q2skip")
q_reads(h, 2); h.e("s_nop 4"); q_store(h, 1); q_mma(h)
h.e("s_nop 12")
q_store(h, 2)
h.e("s_branch L_q2done")
h.label("L_q2skip")
h.e("s_nop 12")
q_store(h, 1)
h.label("L_q2done")
h.wait_all_ds()
h.e("s_barrier")
wl_convert(h, tw3, RB, 3)
gelu_part(h, 1, "b")
h.e(f"s_lshl_b32 s40, s{S_HW}, 8")
h.e(f"s_add_u32 s40, s40, {PART}")
h.e(f"v_lshl_add_u32 v{G}, v{V_LANE}, 2, s40")
h.e(f"v_permlane32_swap_b32 v{G+8}, v{G+9}")
h.e("s_nop 1")
h.e(f"v_add_f32 v{G+8}, v{G+8}, v{G+9}")
h.dsop(f"ds_write_b32 v{G}, v{G+8}")
h.wait_all_ds()
stamp(h, 10)
h.e("s_barrier")
stamp(h, 11)
h.c("lin slots")
H_LI = 96
h.e(f"v_and_b32 v{H_T}, 255, v0")
h.e(f"v_lshrrev_b32 v{H_T+1}, 4, v{H_T}")
h.e(f"v_add_u32 v{H_T+2}, 16, v{H_T+1}")
h.e(f"v_min_u32 v{H_T+2}, 25, v{H_T+2}")
h.e(f"v_bfe_u32 v{H_T+3}, v{H_T}, 3, 1")
h.e(f"v_and_b32 v{H_T+4}, 7, v{H_T}")
h.e(f"v_min_u32 v{H_T+5}, 6, v{H_T+4}")
h.e(f"v_lshl_add_u32 v{H_T+5}, v{H_T+5}, 2, v{H_T+3}")
h.e(f"v_min_u32 v{H_T+6}, 5, v{H_T+4}")
h.e(f"v_lshl_add_u32 v{H_T+6}, v{H_T+6}, 2, v{H_T+3}")
for ps in range(2):
    iv = H_T + 1 + ps
    h.e(f"v_mul_u32_u24 v{H_T+7}, 26, v{iv}")
    h.e(f"v_add_u32 v{H_LI+2+2*ps}, v{H_T+7}, v{H_T+5}")
    h.e(f"v_mul_u32_u24 v{H_LI+2+2*ps}, {QS_ROW}, v{H_LI+2+2*ps}")
    h.e(f"v_add_u32 v{H_LI+3+2*ps}, v{H_T+7}, v{H_T+6}")
    h.e(f"v_mul_u32_u24 v{H_LI+3+2*ps}, {QS_ROW}, v{H_LI+3+2*ps}")
    h.dsop(f"ds_read_u16 v{H_LI+10+2*ps}, v{H_LI+2+2*ps} offset:{QS+52}")
    h.dsop(f"ds_read_u16_d16_hi v{H_LI+11+2*ps}, v{H_LI+3+2*ps} offset:{QS+52+2*QS_ROW}")
    h.e(f"v_mul_u32_u24 v{H_LI+6+ps}, {QROW}, v{iv}")
    h.e(f"v_mul_u32_u24 v{H_T+7}, 400, v{H_T+3}")
    h.e(f"v_add_u32 v{H_LI+6+ps}, v{H_LI+6+ps}, v{H_T+7}")
    h.e(f"v_lshl_add_u32 v{H_LI+6+ps}, v{H_T+4}, 2, v{H_LI+6+ps}")
    h.e(f"v_add_u32 v{H_LI+6+ps}, {QW1 + 92*4}, v{H_LI+6+ps}")
h.e(f"v_mov_b32 v{H_LI+8}, -1")
h.e(f"v_mov_b32 v{H_T+7}, 0xffff")
h.e(f"v_cmp_eq_u32 vcc, 6, v{H_T+4}")
h.e("s_nop 1")
h.e(f"v_cndmask_b32 v{H_LI+8}, v{H_LI+8}, v{H_T+7}, vcc")
h.e(f"v_cmp_eq_u32 vcc, 7, v{H_T+4}")
h.e("s_nop 1")
h.e(f"v_cndmask_b32 v{H_LI+8}, v{H_LI+8}, v{H_Z4}, vcc")
h.e(f"v_and_b32 v{H_T+7}, 15, v{H_T}")
h.e(f"v_cmp_eq_u32 vcc, 6, v{H_T+7}")
for ps, src in ((0, H_SM + 3), (1, H_W3B)):
    h.e(f"v_lshlrev_b32 v{H_LI+ps}, 16, v{src}")
    h.e(f"v_mul_f32 v{H_LI+ps}, 0x43800000, v{H_LI+ps}")
    h.e(f"v_cvt_pk_f16_f32 v{H_LI+ps}, 0, v{H_LI+ps}")
    h.e(f"v_cndmask_b32 v{H_LI+ps}, v{H_Z4}, v{H_LI+ps}, vcc")
h.wait_all_ds()
for ps in range(2):
    h.e(f"v_and_b32 v{H_LI+11+2*ps}, 0xffff0000, v{H_LI+11+2*ps}")
    h.e(f"v_or_b32 v{H_LI+10+2*ps}, v{H_LI+10+2*ps}, v{H_LI+11+2*ps}")
    h.e(f"v_and_or_b32 v{H_LI+10+2*ps}, v{H_LI+10+2*ps}, v{H_LI+8}, v{H_LI+ps}")
    h.dsop(f"ds_write_b32 v{H_LI+6+ps}, v{H_LI+10+2*ps}")
sel_setup(h)
sym_addr_setup(h, 56, QS, 26 * QS_ROW, QW1)
h.e("s_barrier")
sym_run(h, 56, 26 * QS_ROW)
h.wait_all_ds()
stamp(h, 12)
h.e("s_barrier")
if DEBUG == "lds":
    h.e(f"s_cmp_lg_u32 s{S_WG}, 0")
    h.e("s_cbranch_scc1 L_nold")
    h.e(f"v_and_b32 v60, 255, v0")
    h.e(f"v_lshlrev_b32 v60, 4, v60")
    h.e(f"v_add_u32 v61, 0x400000, v60")
    for k in range(40):
        h.e(f"ds_read_b128 v[64:67], v60")
        h.e("s_waitcnt lgkmcnt(0)")
        h.e(f"global_store_dwordx4 v61, v[64:67], {sr(P_WS,2)}")
        h.e(f"v_add_u32 v60, 4096, v60")
        h.e(f"v_add_u32 v61, 4096, v61")
        h.e("s_waitcnt vmcnt(0)")
    h.label("L_nold")
h.e(f"s_cmp_lg_u32 s{S_WAVE}, 4")
h.e("s_cbranch_scc1 L_hfin")
h.c("poll the group counter (temporary: spin), fetch DNN partials")
h.e(f"s_lshr_b32 s40, s{S_GRP}, 1")
h.e(f"s_lshl_b32 s40, s40, 2")
h.e(f"s_add_u32 s40, s40, 128")
h.e(f"v_mov_b32 v{H_T}, s40")
h.e(f"s_and_b32 s41, s{S_WG}, 7")
h.e(f"s_lshl_b32 s41, s41, 2")
h.e(f"v_mov_b32 v{G}, 0")
h.e(f"global_load_ushort v{G+1}, v{G}, {sr(P_BO,2)}")
h.label("L_poll")
h.e(f"global_load_dword v{H_T+1}, v{H_T}, {sr(P_DBG,2)} sc1")
h.e("s_waitcnt vmcnt(0)")
h.e(f"v_readfirstlane_b32 s40, v{H_T+1}")
h.e("s_lshr_b32 s40, s40, s41")
h.e("s_and_b32 s40, s40, 0xf")
h.e("s_cmp_lt_u32 s40, 4")
h.e("s_cbranch_scc1 L_poll")
h.e(f"v_lshrrev_b32 v{H_T}, 4, v{V_LANE}")
h.e(f"v_and_b32 v{H_T+1}, 15, v{V_LANE}")
h.e(f"v_lshlrev_b32 v{H_T+2}, 8, v{H_T}")
h.e(f"v_lshl_add_u32 v{H_T+2}, v{H_T+1}, 2, v{H_T+2}")
h.e(f"s_lshl_b32 s40, s{S_GRP}, 10")
h.e(f"s_lshl_b32 s41, s{S_Q}, 6")
h.e(f"s_add_u32 s40, s40, s41")
h.e(f"v_add_u32 v{H_T+2}, s40, v{H_T+2}")
h.e(f"global_load_dword v{H_T+4}, v{H_T+2}, {sr(P_WS,2)} sc1")
h.e(f"v_lshlrev_b32 v{H_T+2}, 2, v{V_LANE}")
h.e(f"v_add_u32 v{H_T+2}, {FIN}, v{H_T+2}")
h.e("s_waitcnt vmcnt(0)")
h.e(f"ds_write_b32 v{H_T+2}, v{H_T+4}")
h.e(f"v_lshlrev_b32 v{H_T+2}, 2, v{H_T+1}")
h.e(f"v_add_u32 v{H_T+2}, {FIN}, v{H_T+2}")
h.e(f"ds_read2_b32 {vr(H_T+4,2)}, v{H_T+2} offset0:0 offset1:16")
h.e(f"ds_read2_b32 {vr(H_T+6,2)}, v{H_T+2} offset0:32 offset1:48")
h.e(f"v_lshlrev_b32 v{G+1}, 16, v{G+1}")
h.e(f"v_lshlrev_b32 v{H_T+3}, 3, v{H_T+1}")
h.e(f"v_add_u32 v{H_T+3}, {CINP}, v{H_T+3}")
h.e("s_waitcnt lgkmcnt(0)")
h.e(f"v_add_f32 v{H_T+4}, v{H_T+4}, v{H_T+5}")
h.e(f"v_add_f32 v{H_T+6}, v{H_T+6}, v{H_T+7}")
h.e(f"v_add_f32 v{H_T+4}, v{H_T+4}, v{H_T+6}")
h.e(f"v_add_f32 v{G+1}, v{G+1}, v{H_T+4}")
h.e(f"s_lshl_b32 s40, s{S_WG}, 5")
h.e(f"v_lshl_add_u32 v{G+2}, v{H_T+1}, 1, s40")
stamp(h, 13)
h.e("s_barrier")
h.e(f"ds_read_b64 {vr(H_T+4,2)}, v{H_T+3}")
h.e("s_waitcnt lgkmcnt(0)")
h.e(f"v_add_f32 v{H_T+4}, v{H_T+4}, v{H_T+5}")
h.e(f"v_add_f32 v{G+1}, v{G+1}, v{H_T+4}")
h.e(f"v_cvt_pk_bf16_f32 v{G+1}, v{G+1}, 0")
h.e("s_mov_b64 exec, 0xffff")
h.e(f"global_store_short v{G+2}, v{G+1}, {sr(P_OUT,2)}")
h.e("s_mov_b64 exec, -1")
if DEBUG == "rt":
    h.e("s_memtime s[64:65]")
    h.e("s_memrealtime s[66:67]")
    h.e("s_waitcnt lgkmcnt(0)")
    h.e("s_sub_u32 s64, s64, s60")
    h.e("s_not_b32 s62, s62")
    h.e("s_not_b32 s68, s64")
    h.e("v_mov_b32 v10, 0")
    h.e("v_mov_b32 v11, s66")
    h.e("v_mov_b32 v12, s62")
    h.e("v_mov_b32 v13, s64")
    h.e("v_mov_b32 v14, s68")
    h.e("s_not_b32 s62, s62")
    h.e("v_mov_b32 v15, s62")
    h.e("s_mov_b64 exec, 1")
    h.e(f"global_atomic_umax v10, v11, {sr(P_DBG,2)} sc1")
    h.e(f"global_atomic_umax v10, v12, {sr(P_DBG,2)} offset:4 sc1")
    h.e(f"global_atomic_umax v10, v13, {sr(P_DBG,2)} offset:8 sc1")
    h.e(f"global_atomic_umax v10, v14, {sr(P_DBG,2)} offset:12 sc1")
    h.e(f"global_atomic_umax v10, v15, {sr(P_DBG,2)} offset:16 sc1")
    h.e("s_mov_b64 exec, -1")
stamp(h, 14)
dump_stamps(h, 16)
h.e("s_endpgm")
h.label("L_hfin")
h.e("s_barrier")
dump_stamps(h, 16)
h.e("s_endpgm")

items_tab = []
for n in range(128):
    if n < 91:
        q, p = ITEMS[n]; items_tab.append(q | (p << 8) | (n << 16) | ((1 << 24) if q == p else 0))
    else:
        items_tab.append(0 | (0 << 8) | (91 << 16) | (1 << 24))
pw_tab = []
for lane in range(64):
    if lane < 42:
        lp, rem = lane // 14, lane % 14
        hf, mm = rem // 7, rem % 7
        src = 13 * lp + (4 * (mm >> 1) + 2 * hf + (mm & 1) if mm < 6 else 12)
        mode = 0 if mm < 6 else (1 + hf)
        pw_tab.append(src | ((80 * hf + 52 + 4 * mm) << 8) | (mode << 16))
    else:
        pw_tab.append(0)
txt = f"""; xDeepFM (CIN + DNN) kernel, generated by dev/gen2.py
; @launch grid=(256,1,1) block=(512,1,1) lds=163840
.amdgcn_target "amdgcn-amd-amdhsa--gfx950"
.text
.globl {KN}
.p2align 8
.type {KN},@function
{KN}:
""" + a.text() + c.text() + h.text() + "L_end:\n    s_endpgm\n" + ".p2align 6\nL_items:\n" + "".join(f"    .long {x:#x}\n" for x in items_tab) + "L_pwtab:\n" + "".join(f"    .long {x:#x}\n" for x in pw_tab) + f"""L_code_end:
.section .rodata,"a"
.p2align 6
.amdhsa_kernel {KN}
  .amdhsa_next_free_vgpr 256
  .amdhsa_next_free_sgpr 102
  .amdhsa_accum_offset 256
  .amdhsa_group_segment_fixed_size 0
  .amdhsa_kernarg_size 88
  .amdhsa_user_sgpr_count 2
  .amdhsa_user_sgpr_kernarg_segment_ptr 1
  .amdhsa_system_sgpr_workgroup_id_x 1
.end_amdhsa_kernel
"""
open(OUT, "w").write(txt)
```
